```python
import torch

def _softmax(x, axis=-1):
    return torch.softmax(x, dim=axis)
def _gelu(x):
    return torch.nn.functional.gelu(x, approximate="tanh")
def _silu(x):
    return torch.nn.functional.silu(x)
def _sigmoid(x):
    return torch.sigmoid(x)
def _layernorm(x, axis=-1, eps=1e-5):
    m = x.mean(dim=axis, keepdim=True)
    v = x.var(dim=axis, keepdim=True, unbiased=False)
    return (x - m) / torch.sqrt(v + eps)
def _scatter_add(tgt, idx, src, axis=0):
    return tgt.clone().index_add_(axis, idx, src)
def _segment_sum(src, seg, n):
    out = torch.zeros((n,) + src.shape[1:], dtype=src.dtype)
    return out.index_add_(0, seg, src)
def _pad(x, pw):
    flat = tuple(v for pair in reversed(pw) for v in pair)
    return torch.nn.functional.pad(x, flat)

kernel_name = 'standalone__gqa_block_cached__sampling'

def setup_inputs():

    _w = (lambda a: (lambda t: t.to(torch.bfloat16) if t.is_floating_point() else t)(torch.as_tensor(a)))
    B, Sq, D = 8, 4, 512
    Hq, Hkv, Sk, Dh = 32, 8, 4096, 128
    assert Hq % Hkv == 0, (Hq, Hkv)
    return {
        "x": _w((lambda *s: torch.randn(*s, dtype=torch.bfloat16) * 0.8)(B, Sq, D)),
        "k_cache": _w((lambda *s: torch.randn(*s, dtype=torch.bfloat16) * 0.8)(B, Hkv, Sk, Dh)),
        "v_cache": _w((lambda *s: torch.randn(*s, dtype=torch.bfloat16) * 0.05)(B, Hkv, Sk, Dh)),
        "wq": _w((lambda *s: torch.randn(*s, dtype=torch.bfloat16) * 0.8)(D, Hq * Dh) * (D ** -0.5)),
        "wo": _w((lambda *s: torch.randn(*s, dtype=torch.bfloat16) * 0.05)(Hq * Dh, D) * ((Hq * Dh) ** -0.5)),
    }

def reference(x, k_cache, v_cache, wq, wo):
    B, Sq, D = x.shape
    Hq, Dh = 32, 128
    Hkv = k_cache.shape[1]
    rep = Hq // Hkv
    q = (lambda x, *d: x.permute(*d))((x @ wq).reshape(B, Sq, Hq, Dh), 0, 2, 1, 3)
    k = (lambda x, n, axis: torch.repeat_interleave(x, n, dim=axis))(k_cache, rep, axis=1)
    v = (lambda x, n, axis: torch.repeat_interleave(x, n, dim=axis))(v_cache, rep, axis=1)
    scores = torch.einsum("bhqd,bhkd->bhqk", q, k) * (Dh ** -0.5)
    p = _softmax(scores, axis=-1)
    o = torch.einsum("bhqk,bhkd->bhqd", p, v)
    return (lambda x, *d: x.permute(*d))(o, 0, 2, 1, 3).reshape(B, Sq, Hq * Dh) @ wo
```

```python
import sys

STOP = sys.argv[2] if len(sys.argv) > 2 else "none"
OUT = sys.argv[1] if len(sys.argv) > 1 else "standalone__gqa_block_cached__sampling.s"

NWG = 256
NW = 8
KV_BYTES = 8 * 8 * 4096 * 128 * 2
WQ_BYTES = 512 * 4096 * 2
WO_BYTES = 4096 * 512 * 2
X_BYTES = 8 * 4 * 512 * 2
OUT_BYTES = 8 * 4 * 512 * 2
WS_BYTES = 268435456
WS_Q = 0
WS_PB = 0x100000
PB_SZ = 12288
PB_O = 0
PB_ML = 8192
PB_OUT = 10240
L_RING = 0
L_HBUF = 131072
L_QBUF = L_HBUF + 16384
L_ML = L_QBUF + 4096
LDS_BYTES = 163840
SOFTMAX_C = 0.12751743011326107

import struct
def f2u(x): return struct.unpack("<I", struct.pack("<f", x))[0]


class G:
    def __init__(self):
        self.l = []
        self.vm = []
    def __call__(self, s): self.l.append("    " + s)
    def lab(self, s): self.l.append(s + ":")
    def cmt(self, s): self.l.append("    ; " + s)
    def vmem(self, s, tag):
        self(s); self.vm.append(tag)
    def wait_vm(self, tag):
        if tag not in self.vm:
            return
        idx = max(i for i, t in enumerate(self.vm) if t == tag)
        n = len(self.vm) - 1 - idx
        assert n <= 63
        self(f"s_waitcnt vmcnt({n})")
        self.vm = self.vm[idx + 1:]
    def wait_vm0(self):
        self("s_waitcnt vmcnt(0)"); self.vm = []

def v(a, n=1): return f"v{a}" if n == 1 else f"v[{a}:{a+n-1}]"
def s(a, n=1): return f"s{a}" if n == 1 else f"s[{a}:{a+n-1}]"

g = G()

S_WG = 2
S_PTR = 4
SRD_X, SRD_K, SRD_V, SRD_WQ, SRD_WO, SRD_OUT, SRD_DBG, SRD_WS = 20, 24, 28, 32, 36, 40, 44, 48
S_B, S_HKV, S_SP, S_W = 52, 53, 54, 55
S_RING = 56
S_KVB = 57
S_PB = 58
S_C, S_NC, S_SELLO, S_SELHI = 60, 61, 62, 63
S_T = 64
S_CNT = 80
S_EXS = 82
V_TID = 0
V_L = 1
V_T = 2
V_KSRC = 20
V_KRD = 24
V_VOFF = 28
V_M, V_LS = 30, 31
V_Q = 32
V_O = 48
V_KOP = 80
V_VIN = 112
V_S = 144
V_P = 152
V_WRAW = 156
V_X = 220
NVGPR = 256

def srd(base, ptr, nbytes):
    g(f"s_mov_b32 {s(base)}, {s(ptr)}")
    g(f"s_mov_b32 {s(base+1)}, {s(ptr+1)}")
    g(f"s_mov_b32 {s(base+2)}, {nbytes:#x}")
    g(f"s_mov_b32 {s(base+3)}, 0x00020000")

def xmax_g(val, tmp):
    g(f"v_mov_b32 {v(tmp)}, {v(val)}")
    g("s_nop 1")
    g(f"v_permlane16_swap_b32 {v(val)}, {v(tmp)}")
    g("s_nop 1")
    g(f"v_max_f32 {v(val)}, {v(val)}, {v(tmp)}")
    g(f"v_mov_b32 {v(tmp)}, {v(val)}")
    g("s_nop 1")
    g(f"v_permlane32_swap_b32 {v(val)}, {v(tmp)}")
    g("s_nop 1")
    g(f"v_max_f32 {v(val)}, {v(val)}, {v(tmp)}")

def xsum_g(val, tmp):
    g(f"v_mov_b32 {v(tmp)}, {v(val)}")
    g("s_nop 1")
    g(f"v_permlane16_swap_b32 {v(val)}, {v(tmp)}")
    g("s_nop 1")
    g(f"v_add_f32 {v(val)}, {v(val)}, {v(tmp)}")
    g(f"v_mov_b32 {v(tmp)}, {v(val)}")
    g("s_nop 1")
    g(f"v_permlane32_swap_b32 {v(val)}, {v(tmp)}")
    g("s_nop 1")
    g(f"v_add_f32 {v(val)}, {v(val)}, {v(tmp)}")

def end_kernel():
    g("s_endpgm")

def prologue():
    g(f"s_load_dwordx16 {s(S_PTR,16)}, s[0:1], 0")
    g(f"s_cmp_ge_u32 {s(S_WG)}, {NWG}")
    g("s_cbranch_scc1 L_END")
    g(f"s_lshr_b32 {s(S_B)}, {s(S_WG)}, 5")
    g(f"s_lshr_b32 {s(S_HKV)}, {s(S_WG)}, 2")
    g(f"s_and_b32 {s(S_HKV)}, {s(S_HKV)}, 7")
    g(f"s_and_b32 {s(S_SP)}, {s(S_WG)}, 3")
    g(f"v_and_b32 {v(V_L)}, 63, {v(V_TID)}")
    g(f"v_lshrrev_b32 {v(V_T)}, 6, {v(V_TID)}")
    g("s_nop 0")
    g(f"v_readfirstlane_b32 {s(S_W)}, {v(V_T)}")
    g(f"s_lshl_b32 {s(S_RING)}, {s(S_W)}, 14")
    g(f"s_lshl_b32 {s(S_T)}, {s(S_B)}, 3")
    g(f"s_add_u32 {s(S_T)}, {s(S_T)}, {s(S_HKV)}")
    g(f"s_lshl_b32 {s(S_T)}, {s(S_T)}, 20")
    g(f"s_lshl_b32 {s(S_T+1)}, {s(S_SP)}, 18")
    g(f"s_add_u32 {s(S_KVB)}, {s(S_T)}, {s(S_T+1)}")
    g(f"s_mul_i32 {s(S_PB)}, {s(S_WG)}, {PB_SZ}")
    g(f"s_add_u32 {s(S_PB)}, {s(S_PB)}, {WS_PB:#x}")
    g(f"s_mov_b32 {s(S_C)}, {f2u(SOFTMAX_C):#x}")
    g(f"s_mov_b32 {s(S_NC)}, {f2u(-SOFTMAX_C):#x}")
    g(f"s_mov_b32 {s(S_SELLO)}, 0x05040100")
    g(f"s_mov_b32 {s(S_SELHI)}, 0x07060302")
    g("s_waitcnt lgkmcnt(0)")
    srd(SRD_X, S_PTR + 0, X_BYTES)
    srd(SRD_K, S_PTR + 2, KV_BYTES)
    srd(SRD_V, S_PTR + 4, KV_BYTES)
    srd(SRD_WQ, S_PTR + 6, WQ_BYTES)
    srd(SRD_WO, S_PTR + 8, WO_BYTES)
    srd(SRD_OUT, S_PTR + 10, OUT_BYTES)
    srd(SRD_DBG, S_PTR + 12, 256)
    srd(SRD_WS, S_PTR + 14, WS_BYTES)
    r, gq = V_T + 0, V_T + 1
    g(f"v_and_b32 {v(r)}, 15, {v(V_L)}")
    g(f"v_lshrrev_b32 {v(gq)}, 4, {v(V_L)}")
    for a in range(4):
        g(f"v_lshlrev_b32 {v(V_T+2)}, 2, {v(gq)}")
        g(f"v_add_u32 {v(V_T+2)}, {a}, {v(V_T+2)}")
        g(f"v_xor_b32 {v(V_T+2)}, {v(V_T+2)}, {v(r)}")
        g(f"v_lshlrev_b32 {v(V_T+2)}, 4, {v(V_T+2)}")
        g(f"v_lshl_add_u32 {v(V_KSRC+a)}, {v(gq)}, 8, {v(V_T+2)}")
    g(f"v_and_b32 {v(V_T+2)}, 3, {v(r)}")
    g(f"v_lshlrev_b32 {v(V_T+2)}, 2, {v(V_T+2)}")
    g(f"v_lshrrev_b32 {v(V_T+3)}, 2, {v(r)}")
    g(f"v_add_u32 {v(V_T+2)}, {v(V_T+2)}, {v(V_T+3)}")
    g(f"v_lshlrev_b32 {v(V_T+2)}, 8, {v(V_T+2)}")
    g(f"v_add_u32 {v(V_T+2)}, {s(S_RING)}, {v(V_T+2)}")
    for t in range(4):
        g(f"v_add_u32 {v(V_T+3)}, {4*t}, {v(gq)}")
        g(f"v_xor_b32 {v(V_T+3)}, {v(V_T+3)}, {v(r)}")
        g(f"v_lshl_add_u32 {v(V_KRD+t)}, {v(V_T+3)}, 4, {v(V_T+2)}")
    g(f"v_lshlrev_b32 {v(V_VOFF)}, 4, {v(V_L)}")

def issue_K(it):
    sl = it & 1
    g(f"s_lshl_b32 {s(S_T)}, {s(S_W)}, 13")
    g(f"s_add_u32 {s(S_T)}, {s(S_T)}, {s(S_KVB)}")
    if it:
        g(f"s_add_u32 {s(S_T)}, {s(S_T)}, {it*8*8192:#x}")
    g(f"s_add_u32 {s(S_T+1)}, {s(S_T)}, 4096")
    g(f"s_add_u32 m0, {s(S_RING)}, {sl*8192}")
    g("s_nop 0")
    for a in range(4):
        g.vmem(f"buffer_load_dwordx4 {v(V_KSRC+a)}, {s(SRD_K,4)}, {s(S_T)} offen offset:{a*1024} nt lds", f"K{it}")
    g(f"s_add_u32 m0, {s(S_RING)}, {sl*8192+4096}")
    g("s_nop 0")
    for a in range(4):
        g.vmem(f"buffer_load_dwordx4 {v(V_KSRC+a)}, {s(SRD_K,4)}, {s(S_T+1)} offen offset:{a*1024} nt lds", f"K{it}")

def issue_V(it):
    g.cmt(f"V block {it} -> registers")
    g(f"s_lshl_b32 {s(S_T)}, {s(S_W)}, 13")
    g(f"s_add_u32 {s(S_T)}, {s(S_T)}, {s(S_KVB)}")
    if it:
        g(f"s_add_u32 {s(S_T)}, {s(S_T)}, {it*8*8192:#x}")
    g(f"s_add_u32 {s(S_T+1)}, {s(S_T)}, 4096")
    for j in range(8):
        g.vmem(f"buffer_load_dwordx4 {v(V_VIN+4*j,4)}, {v(V_VOFF)}, {s(SRD_V,4)}, {s(S_T + (j>>2))} offen offset:{(j&3)*1024} nt", f"V{it}")

def issue_WO():
    g.cmt("wo slice -> registers (used in T4)")
    g(f"v_lshrrev_b32 {v(V_T)}, 4, {v(V_L)}")
    g(f"v_lshlrev_b32 {v(V_T)}, 15, {v(V_T)}")
    g(f"v_and_b32 {v(V_T+1)}, 15, {v(V_L)}")
    g(f"v_lshl_add_u32 {v(V_T)}, {v(V_T+1)}, 4, {v(V_T)}")
    g(f"s_lshl_b32 {s(S_T)}, {s(S_HKV)}, 9")
    g(f"s_lshr_b32 {s(S_T+1)}, {s(S_W)}, 1")
    g(f"s_lshl_b32 {s(S_T+1)}, {s(S_T+1)}, 7")
    g(f"s_add_u32 {s(S_T)}, {s(S_T)}, {s(S_T+1)}")
    g(f"s_and_b32 {s(S_T+1)}, {s(S_W)}, 1")
    g(f"s_lshl_b32 {s(S_T+1)}, {s(S_T+1)}, 2")
    g(f"s_add_u32 {s(S_T)}, {s(S_T)}, {s(S_T+1)}")
    g(f"s_lshl_b32 {s(S_T)}, {s(S_T)}, 10")
    g(f"s_lshl_b32 {s(S_T+1)}, {s(S_SP)}, 8")
    g(f"s_add_u32 {s(S_T)}, {s(S_T)}, {s(S_T+1)}")
    for u in range(2):
        for j in range(8):
            row = 8 * (j & 3) + 2 * u + (j >> 2)
            g(f"s_add_u32 {s(S_T+2)}, {s(S_T)}, {row*1024:#x}")
            g.vmem(f"buffer_load_dwordx4 {v(V_WRAW + (u*8+j)*4, 4)}, {v(V_T)}, {s(SRD_WO,4)}, {s(S_T+2)} offen", "WO")

def prefetch():
    issue_K(0); issue_V(0); issue_K(1); issue_WO()

QA, QB, QD = V_O, V_O + 16, V_O + 24
def head_issue_loads():
    g.cmt("---- head: q[:, C:C+16] = x @ wq[:, C:C+16],  C = hkv*512 + (sp*8+b)*16 ; wave w takes k in [64w, 64w+64)")
    g(f"v_and_b32 {v(V_T)}, 15, {v(V_L)}")
    g(f"v_lshrrev_b32 {v(V_T+1)}, 4, {v(V_L)}")
    g(f"v_lshlrev_b32 {v(V_T+2)}, 10, {v(V_T)}")
    g(f"v_lshl_add_u32 {v(V_T+2)}, {v(V_T+1)}, 4, {v(V_T+2)}")
    g(f"s_lshl_b32 {s(S_T)}, {s(S_W)}, 7")
    for mt in range(2):
        for u in range(2):
            g(f"s_add_u32 {s(S_T+1)}, {s(S_T)}, {mt*16384 + u*64}")
            g.vmem(f"buffer_load_dwordx4 {v(QA + (mt*2+u)*4, 4)}, {v(V_T+2)}, {s(SRD_X,4)}, {s(S_T+1)} offen", "XQ")
    g(f"v_lshlrev_b32 {v(V_T+3)}, 16, {v(V_T+1)}")
    g(f"v_lshl_add_u32 {v(V_T+3)}, {v(V_T)}, 1, {v(V_T+3)}")
    g(f"s_lshl_b32 {s(S_T+2)}, {s(S_SP)}, 3")
    g(f"s_add_u32 {s(S_T+2)}, {s(S_T+2)}, {s(S_B)}")
    g(f"s_lshl_b32 {s(S_T+2)}, {s(S_T+2)}, 5")
    g(f"s_lshl_b32 {s(S_T+3)}, {s(S_HKV)}, 10")
    g(f"s_add_u32 {s(S_T+2)}, {s(S_T+2)}, {s(S_T+3)}")
    g(f"s_lshl_b32 {s(S_T+3)}, {s(S_W)}, 19")
    g(f"s_add_u32 {s(S_T+3)}, {s(S_T+3)}, {s(S_T+2)}")
    for u in range(2):
        for j in range(8):
            g(f"s_add_u32 {s(S_T+4)}, {s(S_T+3)}, {(32*u+j)*8192:#x}")
            g.vmem(f"buffer_load_ushort {v(V_KOP + u*8 + j)}, {v(V_T+3)}, {s(SRD_WQ,4)}, {s(S_T+4)} offen", "XQ")

def head_mfma_and_stage():
    g.wait_vm("XQ")
    for p in range(8):
        g(f"v_lshl_or_b32 {v(QB + p)}, {v(V_KOP + 2*p + 1)}, 16, {v(V_KOP + 2*p)}")
    g("s_nop 1")
    for mt in range(2):
        g(f"v_mfma_f32_16x16x32_bf16 {v(QD+4*mt,4)}, {v(QA+(mt*2)*4,4)}, {v(QB,4)}, 0")
        g(f"v_mfma_f32_16x16x32_bf16 {v(QD+4*mt,4)}, {v(QA+(mt*2+1)*4,4)}, {v(QB+4,4)}, {v(QD+4*mt,4)}")
    g(f"s_lshl_b32 {s(S_T+5)}, {s(S_W)}, 11")
    g(f"s_add_u32 {s(S_T+5)}, {s(S_T+5)}, {L_HBUF}")
    g(f"v_lshl_add_u32 {v(V_T+4)}, {v(V_L)}, 4, {s(S_T+5)}")
    g("s_nop 7")
    g("s_nop 1")
    for mt in range(2):
        g(f"ds_write_b128 {v(V_T+4)}, {v(QD+4*mt,4)} offset:{mt*1024}")
    g("s_waitcnt lgkmcnt(0)")
    g("s_barrier")

def head_publish():
    R = V_KOP
    g(f"s_lshl_b32 {s(S_T+5)}, {s(S_W)}, 10")
    g(f"s_add_u32 {s(S_T+5)}, {s(S_T+5)}, {L_HBUF}")
    g(f"v_lshl_add_u32 {v(V_T+4)}, {v(V_L)}, 4, {s(S_T+5)}")
    for src in range(8):
        g(f"ds_read_b128 {v(R+4*src,4)}, {v(V_T+4)} offset:{src*2048}")
    g("s_waitcnt lgkmcnt(0)")
    for src in range(1, 8):
        for i in range(4):
            g(f"v_add_f32 {v(R+i)}, {v(R+i)}, {v(R+4*src+i)}")
    g(f"v_cvt_pk_bf16_f32 {v(R+4)}, {v(R+0)}, {v(R+1)}")
    g(f"v_cvt_pk_bf16_f32 {v(R+5)}, {v(R+2)}, {v(R+3)}")
    g(f"v_and_b32 {v(V_T)}, 15, {v(V_L)}")
    g(f"v_lshrrev_b32 {v(V_T+1)}, 4, {v(V_L)}")
    g(f"v_lshlrev_b32 {v(V_T+2)}, 15, {v(V_T+1)}")
    g(f"v_lshl_add_u32 {v(V_T+2)}, {v(V_T)}, 1, {v(V_T+2)}")
    g(f"s_lshl_b32 {s(S_T+5)}, {s(S_W)}, 17")
    g(f"s_add_u32 {s(S_T+5)}, {s(S_T+5)}, {s(S_T+2)}")
    g(f"s_add_u32 {s(S_T+5)}, {s(S_T+5)}, {WS_Q}")
    for i in range(4):
        g(f"s_add_u32 {s(S_T+6)}, {s(S_T+5)}, {i*8192}")
        op = "buffer_store_short" if i % 2 == 0 else "buffer_store_short_d16_hi"
        g.vmem(f"{op} {v(R+4+i//2)}, {v(V_T+2)}, {s(SRD_WS,4)}, {s(S_T+6)} offen sc1", "QST")
    for i in range(4):
        g(f"v_mov_b32 {v(R+8+i)}, -1")
    g(f"v_lshlrev_b32 {v(V_T+3)}, 4, {v(V_L)}")
    g(f"s_mul_i32 {s(S_T+5)}, {s(S_W)}, 6144")
    g(f"s_add_u32 {s(S_T+5)}, {s(S_T+5)}, {s(S_PB)}")
    g(f"s_add_u32 {s(S_T+6)}, {s(S_T+5)}, 4096")
    for i in range(6):
        so = S_T + 5 if i < 4 else S_T + 6
        g.vmem(f"buffer_store_dwordx4 {v(R+8,4)}, {v(V_T+3)}, {s(SRD_WS,4)}, {s(so)} offen offset:{(i&3)*1024} sc1", "QST")
    g.wait_vm0()
    g(f"s_and_b32 {s(S_T+5)}, {s(S_WG)}, 63")
    g(f"s_lshl_b32 {s(S_T+5)}, {s(S_T+5)}, 2")
    g(f"v_mov_b32 {v(V_T)}, 1")
    g(f"v_mov_b32 {v(V_T+1)}, {s(S_T+5)}")
    g(f"s_mov_b64 {s(S_EXS,2)}, exec")
    g("s_mov_b64 exec, 1")
    g.vmem(f"buffer_atomic_add {v(V_T)}, {v(V_T+1)}, {s(SRD_DBG,4)}, 0 offen sc1", "ATOM")
    g(f"s_mov_b64 exec, {s(S_EXS,2)}")
    g.wait_vm0()

def head_poll_and_stage_q():
    g.cmt("wave 0: poll the 64 arrival counters, then stage this wg's Q operand in LDS")
    g(f"s_mov_b32 {s(S_CNT)}, 0")
    g(f"v_lshlrev_b32 {v(V_T+1)}, 2, {v(V_L)}")
    g.lab("L_POLL")
    g(f"buffer_load_dword {v(V_T)}, {v(V_T+1)}, {s(SRD_DBG,4)}, 0 offen sc1")
    g("s_waitcnt vmcnt(0)")
    g(f"v_cmp_ne_u32 vcc, 8, {v(V_T)}")
    g("s_cbranch_vccz L_POLL_DONE")
    g(f"s_add_u32 {s(S_CNT)}, {s(S_CNT)}, 1")
    g(f"s_cmp_lt_u32 {s(S_CNT)}, 0x8000")
    g("s_cbranch_scc0 L_POLL_DONE")
    g("s_sleep 2")
    g("s_branch L_POLL")
    g.lab("L_POLL_DONE")
    g(f"v_and_b32 {v(V_T)}, 3, {v(V_L)}")
    g(f"v_lshlrev_b32 {v(V_T)}, 13, {v(V_T)}")
    g(f"v_and_b32 {v(V_T+1)}, 15, {v(V_L)}")
    g(f"v_lshrrev_b32 {v(V_T+1)}, 2, {v(V_T+1)}")
    g(f"v_lshl_add_u32 {v(V_T)}, {v(V_T+1)}, 8, {v(V_T)}")
    g(f"v_lshrrev_b32 {v(V_T+1)}, 4, {v(V_L)}")
    g(f"v_lshl_add_u32 {v(V_T)}, {v(V_T+1)}, 4, {v(V_T)}")
    g(f"s_lshl_b32 {s(S_T+5)}, {s(S_B)}, 15")
    g(f"s_lshl_b32 {s(S_T+6)}, {s(S_HKV)}, 10")
    g(f"s_add_u32 {s(S_T+5)}, {s(S_T+5)}, {s(S_T+6)}")
    g(f"s_add_u32 {s(S_T+5)}, {s(S_T+5)}, {WS_Q}")
    for t in range(4):
        g(f"buffer_load_dwordx4 {v(V_KOP+4*t,4)}, {v(V_T)}, {s(SRD_WS,4)}, {s(S_T+5)} offen offset:{t*64} sc1")
    g("s_waitcnt vmcnt(0)")
    g(f"v_lshlrev_b32 {v(V_T+1)}, 4, {v(V_L)}")
    g(f"v_add_u32 {v(V_T+1)}, {L_QBUF}, {v(V_T+1)}")
    for t in range(4):
        g(f"ds_write_b128 {v(V_T+1)}, {v(V_KOP+4*t,4)} offset:{t*1024}")
    g("s_waitcnt lgkmcnt(0)")

def head():
    head_issue_loads()
    g(f"s_cmp_ge_u32 {s(S_W)}, 2")
    g("s_cbranch_scc1 L_ROLE_A")
    saved = list(g.vm)
    head_mfma_and_stage()
    head_publish()
    g(f"s_cmp_eq_u32 {s(S_W)}, 1")
    g("s_cbranch_scc1 L_B_PREFETCH")
    head_poll_and_stage_q()
    g.lab("L_B_PREFETCH")
    g.vm = []
    prefetch()
    vm_b = list(g.vm)
    g("s_branch L_JOIN")
    g.lab("L_ROLE_A")
    g.vm = saved
    prefetch()
    head_mfma_and_stage()
    assert g.vm == vm_b, (g.vm, vm_b)
    g.lab("L_JOIN")
    g("s_barrier")
    g(f"v_lshlrev_b32 {v(V_T+1)}, 4, {v(V_L)}")
    g(f"v_add_u32 {v(V_T+1)}, {L_QBUF}, {v(V_T+1)}")
    for t in range(4):
        g(f"ds_read_b128 {v(V_Q+4*t,4)}, {v(V_T+1)} offset:{t*1024}")
    g("s_waitcnt lgkmcnt(0)")

def softmax_block():
    t0, t1, mn, al, nm = V_T + 0, V_T + 1, V_T + 2, V_T + 3, V_T + 4
    S = V_S
    g(f"v_max3_f32 {v(t0)}, {v(S+0)}, {v(S+1)}, {v(S+2)}")
    g(f"v_max3_f32 {v(t0)}, {v(t0)}, {v(S+3)}, {v(S+4)}")
    g(f"v_max3_f32 {v(t0)}, {v(t0)}, {v(S+5)}, {v(S+6)}")
    g(f"v_max_f32 {v(t0)}, {v(t0)}, {v(S+7)}")
    xmax_g(t0, t1)
    g(f"v_max_f32 {v(mn)}, {v(V_M)}, {v(t0)}")
    g(f"v_sub_f32 {v(al)}, {v(V_M)}, {v(mn)}")
    g(f"v_mul_f32 {v(al)}, {s(S_C)}, {v(al)}")
    g(f"v_exp_f32 {v(al)}, {v(al)}")
    g(f"v_mul_f32 {v(nm)}, {s(S_NC)}, {v(mn)}")
    for i in range(8):
        g(f"v_fma_f32 {v(S+i)}, {v(S+i)}, {s(S_C)}, {v(nm)}")
    for i in range(8):
        g(f"v_exp_f32 {v(S+i)}, {v(S+i)}")
    g(f"v_mov_b32 {v(V_M)}, {v(mn)}")
    g(f"v_mul_f32 {v(V_LS)}, {v(V_LS)}, {v(al)}")
    for i in range(8):
        g(f"v_add_f32 {v(V_LS)}, {v(V_LS)}, {v(S+i)}")
    for i in range(32):
        g(f"v_mul_f32 {v(V_O+i)}, {v(V_O+i)}, {v(al)}")
    for p_ in range(4):
        g(f"v_cvt_pk_bf16_f32 {v(V_P+p_)}, {v(S+2*p_)}, {v(S+2*p_+1)}")

def main_loop():
    g.cmt("---- main: 4 blocks of 32 keys per wave")
    g(f"v_mov_b32 {v(V_M)}, 0xff800000")
    g(f"v_mov_b32 {v(V_LS)}, 0")
    for i in range(32):
        g(f"v_mov_b32 {v(V_O+i)}, 0")
    for it in range(4):
        sl = it & 1
        g.wait_vm(f"K{it}")
        for T in range(2):
            for t in range(4):
                g(f"ds_read_b128 {v(V_KOP + (T*4+t)*4, 4)}, {v(V_KRD+t)} offset:{sl*8192 + T*4096}")
        g("s_waitcnt lgkmcnt(0)")
        if it + 2 < 4:
            issue_K(it + 2)
        for T in range(2):
            for t in range(4):
                c = "0" if t == 0 else v(V_S + 4*T, 4)
                g(f"v_mfma_f32_16x16x32_bf16 {v(V_S+4*T,4)}, {v(V_KOP+(T*4+t)*4,4)}, {v(V_Q+4*t,4)}, {c}")
        g("s_nop 7")
        g("s_nop 1")
        softmax_block()
        g.wait_vm(f"V{it}")
        for t in range(8):
            for p_ in range(4):
                sel = S_SELLO if t % 2 == 0 else S_SELHI
                g(f"v_perm_b32 {v(V_KOP+4*t+p_)}, {v(V_VIN+(2*p_+1)*4+(t>>1))}, {v(V_VIN+(2*p_)*4+(t>>1))}, {s(sel)}")
        if it + 1 < 4:
            issue_V(it + 1)
        g("s_nop 1")
        for t in range(8):
            g(f"v_mfma_f32_16x16x32_bf16 {v(V_O+4*t,4)}, {v(V_KOP+4*t,4)}, {v(V_P,4)}, {v(V_O+4*t,4)}")

def t1_combine_publish():
    g.cmt("---- T1: in-workgroup combine through LDS")
    g(f"s_lshl_b32 {s(S_T)}, {s(S_W)}, 9")
    g(f"s_add_u32 {s(S_T)}, {s(S_T)}, {L_ML}")
    g(f"v_lshl_add_u32 {v(V_T)}, {v(V_L)}, 3, {s(S_T)}")
    g(f"ds_write_b64 {v(V_T)}, {v(V_M,2)}")
    g(f"v_lshl_add_u32 {v(V_T+1)}, {v(V_L)}, 4, {s(S_RING)}")
    g("s_nop 7")
    g("s_nop 1")
    for t in range(8):
        g(f"ds_write_b128 {v(V_T+1)}, {v(V_O+4*t,4)} offset:{t*1024}")
    g("s_waitcnt lgkmcnt(0)")
    g("s_barrier")
    ML, OB, F = V_KOP, V_VIN, V_X
    g(f"v_lshlrev_b32 {v(V_T)}, 3, {v(V_L)}")
    g(f"v_add_u32 {v(V_T)}, {L_ML}, {v(V_T)}")
    for w2 in range(8):
        g(f"ds_read_b64 {v(ML+2*w2,2)}, {v(V_T)} offset:{w2*512}")
    g(f"s_lshl_b32 {s(S_T)}, {s(S_W)}, 10")
    g(f"v_lshl_add_u32 {v(V_T+1)}, {v(V_L)}, 4, {s(S_T)}")
    g(f"v_add_u32 {v(V_T+2)}, 0x10000, {v(V_T+1)}")
    for w2 in range(8):
        a = V_T + 1 if w2 < 4 else V_T + 2
        g(f"ds_read_b128 {v(OB+4*w2,4)}, {v(a)} offset:{(w2&3)*16384}")
    g("s_waitcnt lgkmcnt(0)")
    Mx, Lp, tmp = V_T + 3, V_T + 4, V_T + 5
    g(f"v_max3_f32 {v(Mx)}, {v(ML+0)}, {v(ML+2)}, {v(ML+4)}")
    g(f"v_max3_f32 {v(Mx)}, {v(Mx)}, {v(ML+6)}, {v(ML+8)}")
    g(f"v_max3_f32 {v(Mx)}, {v(Mx)}, {v(ML+10)}, {v(ML+12)}")
    g(f"v_max_f32 {v(Mx)}, {v(Mx)}, {v(ML+14)}")
    for w2 in range(8):
        g(f"v_sub_f32 {v(F+w2)}, {v(ML+2*w2)}, {v(Mx)}")
        g(f"v_mul_f32 {v(F+w2)}, {s(S_C)}, {v(F+w2)}")
        g(f"v_exp_f32 {v(F+w2)}, {v(F+w2)}")
    g("s_nop 0")
    g(f"v_mul_f32 {v(Lp)}, {v(F+0)}, {v(ML+1)}")
    for w2 in range(1, 8):
        g(f"v_fma_f32 {v(Lp)}, {v(F+w2)}, {v(ML+2*w2+1)}, {v(Lp)}")
    xsum_g(Lp, tmp)
    OO = V_X + 8
    for i in range(4):
        g(f"v_mul_f32 {v(OO+i)}, {v(F+0)}, {v(OB+i)}")
    for w2 in range(1, 8):
        for i in range(4):
            g(f"v_fma_f32 {v(OO+i)}, {v(F+w2)}, {v(OB+4*w2+i)}, {v(OO+i)}")
    for i in range(4):
        g(f"v_min_u32 {v(OO+i)}, -2, {v(OO+i)}")
    g(f"s_lshl_b32 {s(S_T)}, {s(S_W)}, 10")
    g(f"s_add_u32 {s(S_T)}, {s(S_T)}, {s(S_PB)}")
    g.vmem(f"buffer_store_dwordx4 {v(OO,4)}, {v(V_VOFF)}, {s(SRD_WS,4)}, {s(S_T)} offen sc1", "PUB")
    g(f"s_cmp_lg_u32 {s(S_W)}, 0")
    g("s_cbranch_scc1 L_T1_NOSTAT")
    g(f"v_min_u32 {v(OO+4)}, -2, {v(Mx)}")
    g(f"v_min_u32 {v(OO+5)}, -2, {v(Lp)}")
    g(f"v_lshlrev_b32 {v(V_T)}, 3, {v(V_L)}")
    g(f"s_add_u32 {s(S_T)}, {s(S_PB)}, {PB_ML}")
    g(f"s_mov_b64 {s(S_EXS,2)}, exec")
    g("s_mov_b64 exec, 0xffff")
    g(f"buffer_store_dwordx2 {v(OO+4,2)}, {v(V_T)}, {s(SRD_WS,4)}, {s(S_T)} offen sc1")
    g(f"s_mov_b64 exec, {s(S_EXS,2)}")
    g.lab("L_T1_NOSTAT")
    g.vm.append("PUB")

def umax_chain(regs, dst):
    regs = list(regs)
    g(f"v_max3_u32 {v(dst)}, {v(regs[0])}, {v(regs[1])}, {v(regs[2])}")
    i = 3
    while i < len(regs):
        if i + 1 < len(regs):
            g(f"v_max3_u32 {v(dst)}, {v(dst)}, {v(regs[i])}, {v(regs[i+1])}"); i += 2
        else:
            g(f"v_max_u32 {v(dst)}, {v(dst)}, {v(regs[i])}"); i += 1

def poll_tail(name, issue_loads, regs, tmp):
    g(f"s_mov_b32 {s(S_CNT)}, 0")
    g.lab(f"L_{name}_RETRY")
    issue_loads()
    g("s_waitcnt vmcnt(0)")
    umax_chain(regs, tmp)
    g(f"v_cmp_eq_u32 vcc, -1, {v(tmp)}")
    g(f"s_cbranch_vccz L_{name}_OK")
    g(f"s_add_u32 {s(S_CNT)}, {s(S_CNT)}, 1")
    g(f"s_cmp_lt_u32 {s(S_CNT)}, 0x8000")
    g(f"s_cbranch_scc0 L_{name}_OK")
    g("s_sleep 1")
    g(f"s_branch L_{name}_RETRY")
    g.lab(f"L_{name}_OK")
    g.vm = []

def t3_t4():
    g.cmt("---- T3: gather the 4 split partials of (b,hkv); wave = (hq = w>>1, th = w&1)")
    DD = [V_VIN, V_VIN + 16, V_KOP, V_KOP + 16]
    ST = V_X
    g(f"v_lshrrev_b32 {v(V_T)}, 4, {v(V_L)}")
    g(f"v_and_b32 {v(V_T+1)}, 3, {v(V_L)}")
    g(f"v_lshl_add_u32 {v(V_T)}, {v(V_T)}, 4, {v(V_T+1)}")
    g(f"v_lshlrev_b32 {v(V_T)}, 4, {v(V_T)}")
    g(f"v_lshlrev_b32 {v(V_T+1)}, 3, {v(V_T+1)}")
    g(f"s_and_b32 {s(S_T)}, {s(S_WG)}, 0xfc")
    g(f"s_mul_i32 {s(S_T)}, {s(S_T)}, {PB_SZ}")
    g(f"s_add_u32 {s(S_T)}, {s(S_T)}, {WS_PB:#x}")
    g(f"s_lshr_b32 {s(S_T+1)}, {s(S_W)}, 1")
    g(f"s_and_b32 {s(S_T+2)}, {s(S_W)}, 1")
    g(f"s_lshl_b32 {s(S_T+3)}, {s(S_T+1)}, 6")
    g(f"s_lshl_b32 {s(S_T+4)}, {s(S_T+2)}, 12")
    g(f"s_add_u32 {s(S_T+3)}, {s(S_T+3)}, {s(S_T+4)}")
    g(f"s_lshl_b32 {s(S_T+4)}, {s(S_T+1)}, 5")
    g(f"s_add_u32 {s(S_T+4)}, {s(S_T+4)}, {PB_ML}")
    for sp2 in range(4):
        g(f"s_add_u32 {s(S_T+8+sp2)}, {s(S_T)}, {sp2*PB_SZ}")
        g(f"s_add_u32 {s(S_T+12+sp2)}, {s(S_T+8+sp2)}, {s(S_T+4)}")
        g(f"s_add_u32 {s(S_T+8+sp2)}, {s(S_T+8+sp2)}, {s(S_T+3)}")
    def loads():
        for sp2 in range(4):
            for tt in range(4):
                g(f"buffer_load_dwordx4 {v(DD[sp2]+4*tt,4)}, {v(V_T)}, {s(SRD_WS,4)}, {s(S_T+8+sp2)} offen offset:{tt*1024} sc1")
            g(f"buffer_load_dwordx2 {v(ST+2*sp2,2)}, {v(V_T+1)}, {s(SRD_WS,4)}, {s(S_T+12+sp2)} offen sc1")
    regs = [DD[sp2] + k for sp2 in range(4) for k in range(16)] + [ST + k for k in range(8)]
    poll_tail("T3", loads, regs, V_T + 2)
    Mx, den, E = V_T + 2, V_T + 3, V_X + 8
    g(f"v_max3_f32 {v(Mx)}, {v(ST+0)}, {v(ST+2)}, {v(ST+4)}")
    g(f"v_max_f32 {v(Mx)}, {v(Mx)}, {v(ST+6)}")
    for sp2 in range(4):
        g(f"v_sub_f32 {v(E+sp2)}, {v(ST+2*sp2)}, {v(Mx)}")
        g(f"v_mul_f32 {v(E+sp2)}, {s(S_C)}, {v(E+sp2)}")
        g(f"v_exp_f32 {v(E+sp2)}, {v(E+sp2)}")
    g("s_nop 0")
    g(f"v_mul_f32 {v(den)}, {v(E+0)}, {v(ST+1)}")
    for sp2 in range(1, 4):
        g(f"v_fma_f32 {v(den)}, {v(E+sp2)}, {v(ST+2*sp2+1)}, {v(den)}")
    g(f"v_rcp_f32 {v(den)}, {v(den)}")
    g("s_nop 0")
    for sp2 in range(4):
        g(f"v_mul_f32 {v(E+sp2)}, {v(E+sp2)}, {v(den)}")
    OV = V_X + 12
    for tt in range(4):
        for i in range(4):
            g(f"v_mul_f32 {v(OV+4*tt+i)}, {v(E+0)}, {v(DD[0]+4*tt+i)}")
            for sp2 in range(1, 4):
                g(f"v_fma_f32 {v(OV+4*tt+i)}, {v(E+sp2)}, {v(DD[sp2]+4*tt+i)}, {v(OV+4*tt+i)}")
    A = V_S
    for u in range(2):
        g(f"v_cvt_pk_bf16_f32 {v(A+4*u+0)}, {v(OV+8*u+0)}, {v(OV+8*u+1)}")
        g(f"v_cvt_pk_bf16_f32 {v(A+4*u+1)}, {v(OV+8*u+2)}, {v(OV+8*u+3)}")
        g(f"v_cvt_pk_bf16_f32 {v(A+4*u+2)}, {v(OV+8*u+4)}, {v(OV+8*u+5)}")
        g(f"v_cvt_pk_bf16_f32 {v(A+4*u+3)}, {v(OV+8*u+6)}, {v(OV+8*u+7)}")
    if STOP == "t3dump":
        return
    WT = V_KOP
    for u in range(2):
        for tc in range(8):
            for p_ in range(4):
                sel = S_SELLO if tc % 2 == 0 else S_SELHI
                g(f"v_perm_b32 {v(WT+(u*8+tc)*4+p_)}, {v(V_WRAW+(u*8+2*p_+1)*4+(tc>>1))}, {v(V_WRAW+(u*8+2*p_)*4+(tc>>1))}, {s(sel)}")
    g("s_nop 1")
    DT = V_O
    for tc in range(8):
        g(f"v_mfma_f32_16x16x32_bf16 {v(DT+4*tc,4)}, {v(A,4)}, {v(WT+tc*4,4)}, 0")
        g(f"v_mfma_f32_16x16x32_bf16 {v(DT+4*tc,4)}, {v(A+4,4)}, {v(WT+(8+tc)*4,4)}, {v(DT+4*tc,4)}")
    g(f"v_lshl_add_u32 {v(V_T+1)}, {v(V_L)}, 4, {s(S_RING)}")
    g("s_nop 7")
    g("s_nop 1")
    for tc in range(8):
        g(f"ds_write_b128 {v(V_T+1)}, {v(DT+4*tc,4)} offset:{8192 + tc*1024}")
    g("s_waitcnt lgkmcnt(0)")
    g("s_barrier")
    RB = V_VIN
    g(f"s_lshl_b32 {s(S_T)}, {s(S_W)}, 10")
    g(f"s_add_u32 {s(S_T)}, {s(S_T)}, 8192")
    g(f"v_lshl_add_u32 {v(V_T+1)}, {v(V_L)}, 4, {s(S_T)}")
    g(f"v_add_u32 {v(V_T+2)}, 0x10000, {v(V_T+1)}")
    for w2 in range(8):
        a = V_T + 1 if w2 < 4 else V_T + 2
        g(f"ds_read_b128 {v(RB+4*w2,4)}, {v(a)} offset:{(w2&3)*16384}")
    g("s_waitcnt lgkmcnt(0)")
    for w2 in range(1, 8):
        for i in range(4):
            g(f"v_add_f32 {v(RB+i)}, {v(RB+i)}, {v(RB+4*w2+i)}")
    for i in range(4):
        g(f"v_min_u32 {v(RB+i)}, -2, {v(RB+i)}")
    g(f"s_lshl_b32 {s(S_T)}, {s(S_W)}, 8")
    g(f"s_add_u32 {s(S_T)}, {s(S_T)}, {s(S_PB)}")
    g(f"s_add_u32 {s(S_T)}, {s(S_T)}, {PB_OUT}")
    g(f"s_mov_b64 {s(S_EXS,2)}, exec")
    g("s_mov_b64 exec, 0xffff")
    g.vmem(f"buffer_store_dwordx4 {v(RB,4)}, {v(V_VOFF)}, {s(SRD_WS,4)}, {s(S_T)} offen sc1", "PUB2")
    g(f"s_mov_b64 exec, {s(S_EXS,2)}")

def final_reduce():
    g.cmt("---- final: wg with hkv == b sums the 8 KV-head partials of (b, sp) in fixed order, writes bf16")
    g(f"s_cmp_lg_u32 {s(S_HKV)}, {s(S_B)}")
    g("s_cbranch_scc1 L_END")
    g("s_mov_b64 exec, 0xffff")
    FB = V_VIN
    g(f"s_lshl_b32 {s(S_T)}, {s(S_B)}, 5")
    g(f"s_add_u32 {s(S_T)}, {s(S_T)}, {s(S_SP)}")
    g(f"s_mul_i32 {s(S_T)}, {s(S_T)}, {PB_SZ}")
    g(f"s_add_u32 {s(S_T)}, {s(S_T)}, {WS_PB + PB_OUT:#x}")
    g(f"s_lshl_b32 {s(S_T+1)}, {s(S_W)}, 8")
    g(f"s_add_u32 {s(S_T)}, {s(S_T)}, {s(S_T+1)}")
    for h2 in range(8):
        g(f"s_add_u32 {s(S_T+8+h2)}, {s(S_T)}, {h2*4*PB_SZ:#x}")
    def loads():
        for h2 in range(8):
            g(f"buffer_load_dwordx4 {v(FB+4*h2,4)}, {v(V_VOFF)}, {s(SRD_WS,4)}, {s(S_T+8+h2)} offen sc1")
    poll_tail("FIN", loads, [FB + k for k in range(32)], V_T + 2)
    for h2 in range(1, 8):
        for i in range(4):
            g(f"v_add_f32 {v(FB+i)}, {v(FB+i)}, {v(FB+4*h2+i)}")
    g(f"v_cvt_pk_bf16_f32 {v(FB+4)}, {v(FB+0)}, {v(FB+1)}")
    g(f"v_cvt_pk_bf16_f32 {v(FB+5)}, {v(FB+2)}, {v(FB+3)}")
    g(f"v_lshlrev_b32 {v(V_T)}, 4, {v(V_L)}")
    g(f"s_lshl_b32 {s(S_T)}, {s(S_B)}, 12")
    g(f"s_lshl_b32 {s(S_T+1)}, {s(S_SP)}, 8")
    g(f"s_add_u32 {s(S_T)}, {s(S_T)}, {s(S_T+1)}")
    g(f"s_lshl_b32 {s(S_T+1)}, {s(S_W)}, 1")
    g(f"s_add_u32 {s(S_T)}, {s(S_T)}, {s(S_T+1)}")
    for s_ in range(4):
        g(f"s_add_u32 {s(S_T+1)}, {s(S_T)}, {s_*1024}")
        op = "buffer_store_short" if s_ % 2 == 0 else "buffer_store_short_d16_hi"
        g(f"{op} {v(FB+4+s_//2)}, {v(V_T)}, {s(SRD_OUT,4)}, {s(S_T+1)} offen")
    g("s_mov_b64 exec, -1")

def emit():
    hdr = open(OUT.replace(".s", ".s.ref")).read().split("; Override launch geometry")[0] if OUT.endswith("sampling.s") else ""
    text = []
    text.append(hdr.rstrip("\n"))
    text.append(f"; @launch grid=({NWG},1,1) block=({NW*64},1,1) lds={LDS_BYTES}")
    text.append('.amdgcn_target "amdgcn-amd-amdhsa--gfx950"')
    text.append(".text")
    text.append(".globl standalone__gqa_block_cached__sampling_kernel")
    text.append(".p2align 8")
    text.append(".type standalone__gqa_block_cached__sampling_kernel,@function")
    text.append("standalone__gqa_block_cached__sampling_kernel:")
    text += g.l
    text.append(""".section .rodata,"a"
.p2align 6
.amdhsa_kernel standalone__gqa_block_cached__sampling_kernel
  .amdhsa_next_free_vgpr %d
  .amdhsa_next_free_sgpr 96
  .amdhsa_accum_offset %d
  .amdhsa_group_segment_fixed_size 0
  .amdhsa_kernarg_size 64
  .amdhsa_user_sgpr_count 2
  .amdhsa_user_sgpr_kernarg_segment_ptr 1
  .amdhsa_system_sgpr_workgroup_id_x 1
.end_amdhsa_kernel""" % (NVGPR, NVGPR))
    open(OUT, "w").write("\n".join(text) + "\n")

if __name__ == "__main__":
    prologue()
    head()
    if STOP == "head":
        g("s_waitcnt vmcnt(0)")
        g.lab("L_END")
        end_kernel()
        emit(); sys.exit(0)
    main_loop()
    t1_combine_publish()
    if STOP == "t1":
        g("s_waitcnt vmcnt(0)")
        g.lab("L_END")
        end_kernel()
        emit(); sys.exit(0)
    t3_t4()
    final_reduce()
    g.lab("L_END")
    end_kernel()
    emit()
```

```python
import sys

STOP = sys.argv[2] if len(sys.argv) > 2 else "none"
PACE = int(sys.argv[4]) if len(sys.argv) > 4 else 4
STAMP = len(sys.argv) > 3 and sys.argv[3] == "stamp"
OUT = sys.argv[1] if len(sys.argv) > 1 else "standalone__gqa_block_cached__sampling.s"

NWG = 256
NW = 8
KV_BYTES = 8 * 8 * 4096 * 128 * 2
WQ_BYTES = 512 * 4096 * 2
WO_BYTES = 4096 * 512 * 2
X_BYTES = 8 * 4 * 512 * 2
OUT_BYTES = 8 * 4 * 512 * 2
WS_BYTES = 268435456
WS_Q = 0
WS_PB = 0x100000
PB_SZ = 12288
PB_O = 0
PB_ML = 8192
PB_OUT = 10240
L_RING = 0
L_HBUF = 0
L_ML = 151552
LDS_BYTES = 163840
SOFTMAX_C = 0.12751743011326107

import struct
def f2u(x): return struct.unpack("<I", struct.pack("<f", x))[0]


class G:
    def __init__(self):
        self.l = []
        self.vm = []
        self.pace = 0
    def __call__(self, s): self.l.append("    " + s)
    def lab(self, s): self.l.append(s + ":")
    def cmt(self, s): self.l.append("    ; " + s)
    def vmem(self, s, tag):
        if self.pace and len(self.vm) >= self.pace:
            n = self.pace - 1
            self(f"s_waitcnt vmcnt({n})")
            self.vm = self.vm[len(self.vm) - n:] if n else []
        self(s); self.vm.append(tag)
    def wait_vm(self, tag):
        if tag not in self.vm:
            return
        idx = max(i for i, t in enumerate(self.vm) if t == tag)
        n = len(self.vm) - 1 - idx
        assert n <= 63
        self(f"s_waitcnt vmcnt({n})")
        self.vm = self.vm[idx + 1:]
    def wait_vm0(self):
        self("s_waitcnt vmcnt(0)"); self.vm = []

def v(a, n=1): return f"v{a}" if n == 1 else f"v[{a}:{a+n-1}]"
def s(a, n=1): return f"s{a}" if n == 1 else f"s[{a}:{a+n-1}]"

g = G()

S_WG = 2
S_PTR = 4
SRD_X, SRD_K, SRD_V, SRD_WQ, SRD_WO, SRD_OUT, SRD_DBG, SRD_WS = 20, 24, 28, 32, 36, 40, 44, 48
S_B, S_HKV, S_SP, S_W = 52, 53, 54, 55
S_RING = 56
S_KVB = 57
S_PB = 58
S_C, S_NC, S_SELLO, S_SELHI = 60, 61, 62, 63
S_T = 64
S_CNT = 80
S_EXS = 82
V_TID = 0
V_L = 1
V_T = 2
V_KSRC = 20
V_KRD = 24
V_VOFF = 28
V_M, V_LS = 30, 31
V_Q = 32
V_O = 48
V_KOP = 80
V_VIN = 112
V_S = 144
V_P = 152
V_WRAW = 156
V_X = 220
NVGPR = 256

def srd(base, ptr, nbytes):
    g(f"s_mov_b32 {s(base)}, {s(ptr)}")
    g(f"s_mov_b32 {s(base+1)}, {s(ptr+1)}")
    g(f"s_mov_b32 {s(base+2)}, {nbytes:#x}")
    g(f"s_mov_b32 {s(base+3)}, 0x00020000")

def xmax_g(val, tmp):
    g(f"v_mov_b32 {v(tmp)}, {v(val)}")
    g("s_nop 1")
    g(f"v_permlane16_swap_b32 {v(val)}, {v(tmp)}")
    g("s_nop 1")
    g(f"v_max_f32 {v(val)}, {v(val)}, {v(tmp)}")
    g(f"v_mov_b32 {v(tmp)}, {v(val)}")
    g("s_nop 1")
    g(f"v_permlane32_swap_b32 {v(val)}, {v(tmp)}")
    g("s_nop 1")
    g(f"v_max_f32 {v(val)}, {v(val)}, {v(tmp)}")

def xsum_g(val, tmp):
    g(f"v_mov_b32 {v(tmp)}, {v(val)}")
    g("s_nop 1")
    g(f"v_permlane16_swap_b32 {v(val)}, {v(tmp)}")
    g("s_nop 1")
    g(f"v_add_f32 {v(val)}, {v(val)}, {v(tmp)}")
    g(f"v_mov_b32 {v(tmp)}, {v(val)}")
    g("s_nop 1")
    g(f"v_permlane32_swap_b32 {v(val)}, {v(tmp)}")
    g("s_nop 1")
    g(f"v_add_f32 {v(val)}, {v(val)}, {v(tmp)}")

S_STAMP = 84
def stamp(i):
    if not STAMP: return
    g(f"s_memrealtime {s(S_T+14,2)}")
    g("s_waitcnt lgkmcnt(0)")
    g(f"s_mov_b32 {s(S_STAMP+i)}, {s(S_T+14)}")
def stamp_flush(n):
    if not STAMP: return
    g(f"s_lshl_b32 {s(S_T)}, {s(S_WG)}, 3")
    g(f"s_add_u32 {s(S_T)}, {s(S_T)}, {s(S_W)}")
    g(f"s_lshl_b32 {s(S_T)}, {s(S_T)}, 5")
    g(f"s_add_u32 {s(S_T)}, {s(S_T)}, 0x800000")
    g("s_mov_b64 exec, 1")
    g(f"v_mov_b32 {v(V_T+1)}, 0")
    for i in range(n):
        g(f"v_mov_b32 {v(V_T)}, {s(S_STAMP+i)}")
        g(f"buffer_store_dword {v(V_T)}, {v(V_T+1)}, {s(SRD_WS,4)}, {s(S_T)} offen offset:{i*4}")
    g("s_waitcnt vmcnt(0)")
    g("s_mov_b64 exec, -1")

def end_kernel():
    g("s_endpgm")

def prologue():
    g(f"s_load_dwordx16 {s(S_PTR,16)}, s[0:1], 0")
    g(f"s_cmp_ge_u32 {s(S_WG)}, {NWG}")
    g("s_cbranch_scc1 L_END")
    g(f"s_lshr_b32 {s(S_B)}, {s(S_WG)}, 5")
    g(f"s_lshr_b32 {s(S_HKV)}, {s(S_WG)}, 2")
    g(f"s_and_b32 {s(S_HKV)}, {s(S_HKV)}, 7")
    g(f"s_and_b32 {s(S_SP)}, {s(S_WG)}, 3")
    g(f"v_and_b32 {v(V_L)}, 63, {v(V_TID)}")
    g(f"v_lshrrev_b32 {v(V_T)}, 6, {v(V_TID)}")
    g("s_nop 0")
    g(f"v_readfirstlane_b32 {s(S_W)}, {v(V_T)}")
    g(f"s_lshl_b32 {s(S_RING)}, {s(S_W)}, 14")
    g(f"s_lshl_b32 {s(S_T)}, {s(S_B)}, 3")
    g(f"s_add_u32 {s(S_T)}, {s(S_T)}, {s(S_HKV)}")
    g(f"s_lshl_b32 {s(S_T)}, {s(S_T)}, 20")
    g(f"s_lshl_b32 {s(S_T+1)}, {s(S_SP)}, 18")
    g(f"s_add_u32 {s(S_KVB)}, {s(S_T)}, {s(S_T+1)}")
    g(f"s_mul_i32 {s(S_PB)}, {s(S_WG)}, {PB_SZ}")
    g(f"s_add_u32 {s(S_PB)}, {s(S_PB)}, {WS_PB:#x}")
    g(f"s_mov_b32 {s(S_C)}, {f2u(SOFTMAX_C):#x}")
    g(f"s_mov_b32 {s(S_NC)}, {f2u(-SOFTMAX_C):#x}")
    g(f"s_mov_b32 {s(S_SELLO)}, 0x05040100")
    g(f"s_mov_b32 {s(S_SELHI)}, 0x07060302")
    g("s_waitcnt lgkmcnt(0)")
    srd(SRD_X, S_PTR + 0, X_BYTES)
    srd(SRD_K, S_PTR + 2, KV_BYTES)
    srd(SRD_V, S_PTR + 4, KV_BYTES)
    srd(SRD_WQ, S_PTR + 6, WQ_BYTES)
    srd(SRD_WO, S_PTR + 8, WO_BYTES)
    srd(SRD_OUT, S_PTR + 10, OUT_BYTES)
    srd(SRD_DBG, S_PTR + 12, 256)
    srd(SRD_WS, S_PTR + 14, WS_BYTES)
    r, gq = V_T + 0, V_T + 1
    g(f"v_and_b32 {v(r)}, 15, {v(V_L)}")
    g(f"v_lshrrev_b32 {v(gq)}, 4, {v(V_L)}")
    for a in range(4):
        g(f"v_lshlrev_b32 {v(V_T+2)}, 2, {v(gq)}")
        g(f"v_add_u32 {v(V_T+2)}, {a}, {v(V_T+2)}")
        g(f"v_xor_b32 {v(V_T+2)}, {v(V_T+2)}, {v(r)}")
        g(f"v_lshlrev_b32 {v(V_T+2)}, 4, {v(V_T+2)}")
        g(f"v_lshl_add_u32 {v(V_KSRC+a)}, {v(gq)}, 8, {v(V_T+2)}")
    g(f"v_and_b32 {v(V_T+2)}, 3, {v(r)}")
    g(f"v_lshlrev_b32 {v(V_T+2)}, 2, {v(V_T+2)}")
    g(f"v_lshrrev_b32 {v(V_T+3)}, 2, {v(r)}")
    g(f"v_add_u32 {v(V_T+2)}, {v(V_T+2)}, {v(V_T+3)}")
    g(f"v_lshlrev_b32 {v(V_T+2)}, 8, {v(V_T+2)}")
    g(f"v_add_u32 {v(V_T+2)}, {s(S_RING)}, {v(V_T+2)}")
    for t in range(4):
        g(f"v_add_u32 {v(V_T+3)}, {4*t}, {v(gq)}")
        g(f"v_xor_b32 {v(V_T+3)}, {v(V_T+3)}, {v(r)}")
        g(f"v_lshl_add_u32 {v(V_KRD+t)}, {v(V_T+3)}, 4, {v(V_T+2)}")
    g(f"v_lshlrev_b32 {v(V_VOFF)}, 4, {v(V_L)}")

def issue_K(it):
    sl = it & 1
    g(f"s_lshl_b32 {s(S_T)}, {s(S_W)}, 13")
    g(f"s_add_u32 {s(S_T)}, {s(S_T)}, {s(S_KVB)}")
    if it:
        g(f"s_add_u32 {s(S_T)}, {s(S_T)}, {it*8*8192:#x}")
    g(f"s_add_u32 {s(S_T+1)}, {s(S_T)}, 4096")
    g(f"s_add_u32 m0, {s(S_RING)}, {sl*8192}")
    g("s_nop 0")
    for a in range(4):
        g.vmem(f"buffer_load_dwordx4 {v(V_KSRC+a)}, {s(SRD_K,4)}, {s(S_T)} offen offset:{a*1024} nt lds", f"K{it}")
    g(f"s_add_u32 m0, {s(S_RING)}, {sl*8192+4096}")
    g("s_nop 0")
    for a in range(4):
        g.vmem(f"buffer_load_dwordx4 {v(V_KSRC+a)}, {s(SRD_K,4)}, {s(S_T+1)} offen offset:{a*1024} nt lds", f"K{it}")

def issue_V(it):
    g.cmt(f"V block {it} -> registers")
    g(f"s_lshl_b32 {s(S_T)}, {s(S_W)}, 13")
    g(f"s_add_u32 {s(S_T)}, {s(S_T)}, {s(S_KVB)}")
    if it:
        g(f"s_add_u32 {s(S_T)}, {s(S_T)}, {it*8*8192:#x}")
    g(f"s_add_u32 {s(S_T+1)}, {s(S_T)}, 4096")
    for j in range(8):
        g.vmem(f"buffer_load_dwordx4 {v(V_VIN+4*j,4)}, {v(V_VOFF)}, {s(SRD_V,4)}, {s(S_T + (j>>2))} offen offset:{(j&3)*1024} nt", f"V{it}")

def issue_WO():
    g.cmt("wo slice -> registers (used in T4)")
    g(f"v_lshrrev_b32 {v(V_T)}, 4, {v(V_L)}")
    g(f"v_lshlrev_b32 {v(V_T)}, 15, {v(V_T)}")
    g(f"v_and_b32 {v(V_T+1)}, 15, {v(V_L)}")
    g(f"v_lshl_add_u32 {v(V_T)}, {v(V_T+1)}, 4, {v(V_T)}")
    g(f"s_lshl_b32 {s(S_T)}, {s(S_HKV)}, 9")
    g(f"s_lshr_b32 {s(S_T+1)}, {s(S_W)}, 1")
    g(f"s_lshl_b32 {s(S_T+1)}, {s(S_T+1)}, 7")
    g(f"s_add_u32 {s(S_T)}, {s(S_T)}, {s(S_T+1)}")
    g(f"s_and_b32 {s(S_T+1)}, {s(S_W)}, 1")
    g(f"s_lshl_b32 {s(S_T+1)}, {s(S_T+1)}, 2")
    g(f"s_add_u32 {s(S_T)}, {s(S_T)}, {s(S_T+1)}")
    g(f"s_lshl_b32 {s(S_T)}, {s(S_T)}, 10")
    g(f"s_lshl_b32 {s(S_T+1)}, {s(S_SP)}, 8")
    g(f"s_add_u32 {s(S_T)}, {s(S_T)}, {s(S_T+1)}")
    for u in range(2):
        for j in range(8):
            row = 8 * (j & 3) + 2 * u + (j >> 2)
            g(f"s_add_u32 {s(S_T+2)}, {s(S_T)}, {row*1024:#x}")
            g.vmem(f"buffer_load_dwordx4 {v(V_WRAW + (u*8+j)*4, 4)}, {v(V_T)}, {s(SRD_WO,4)}, {s(S_T+2)} offen", "WO")

def prefetch():
    issue_K(0); issue_V(0); issue_K(1); issue_WO()

QA, QB, QD = V_O, V_O + 16, V_O + 24
def head_issue_loads():
    g.cmt("---- head: q[:, C:C+16] = x @ wq[:, C:C+16],  C = hkv*512 + (sp*8+b)*16 ; wave w takes k in [64w, 64w+64)")
    g(f"v_and_b32 {v(V_T)}, 15, {v(V_L)}")
    g(f"v_lshrrev_b32 {v(V_T+1)}, 4, {v(V_L)}")
    g(f"v_lshlrev_b32 {v(V_T+2)}, 10, {v(V_T)}")
    g(f"v_lshl_add_u32 {v(V_T+2)}, {v(V_T+1)}, 4, {v(V_T+2)}")
    g(f"s_lshl_b32 {s(S_T)}, {s(S_W)}, 7")
    for mt in range(2):
        for u in range(2):
            g(f"s_add_u32 {s(S_T+1)}, {s(S_T)}, {mt*16384 + u*64}")
            g.vmem(f"buffer_load_dwordx4 {v(QA + (mt*2+u)*4, 4)}, {v(V_T+2)}, {s(SRD_X,4)}, {s(S_T+1)} offen", "XQ")
    g(f"v_lshlrev_b32 {v(V_T+3)}, 16, {v(V_T+1)}")
    g(f"v_lshl_add_u32 {v(V_T+3)}, {v(V_T)}, 1, {v(V_T+3)}")
    g(f"s_lshl_b32 {s(S_T+2)}, {s(S_SP)}, 3")
    g(f"s_add_u32 {s(S_T+2)}, {s(S_T+2)}, {s(S_B)}")
    g(f"s_lshl_b32 {s(S_T+2)}, {s(S_T+2)}, 5")
    g(f"s_lshl_b32 {s(S_T+3)}, {s(S_HKV)}, 10")
    g(f"s_add_u32 {s(S_T+2)}, {s(S_T+2)}, {s(S_T+3)}")
    g(f"s_lshl_b32 {s(S_T+3)}, {s(S_W)}, 19")
    g(f"s_add_u32 {s(S_T+3)}, {s(S_T+3)}, {s(S_T+2)}")
    for u in range(2):
        for j in range(8):
            g(f"s_add_u32 {s(S_T+4)}, {s(S_T+3)}, {(32*u+j)*8192:#x}")
            g.vmem(f"buffer_load_ushort {v(V_KOP + u*8 + j)}, {v(V_T+3)}, {s(SRD_WQ,4)}, {s(S_T+4)} offen", "XQ")

def head_mfma_and_stage():
    g.wait_vm("XQ")
    for p in range(8):
        g(f"v_lshl_or_b32 {v(QB + p)}, {v(V_KOP + 2*p + 1)}, 16, {v(V_KOP + 2*p)}")
    g("s_nop 1")
    for mt in range(2):
        g(f"v_mfma_f32_16x16x32_bf16 {v(QD+4*mt,4)}, {v(QA+(mt*2)*4,4)}, {v(QB,4)}, 0")
        g(f"v_mfma_f32_16x16x32_bf16 {v(QD+4*mt,4)}, {v(QA+(mt*2+1)*4,4)}, {v(QB+4,4)}, {v(QD+4*mt,4)}")
    g(f"s_lshl_b32 {s(S_T+5)}, {s(S_W)}, 11")
    g(f"s_add_u32 {s(S_T+5)}, {s(S_T+5)}, {L_HBUF}")
    g(f"v_lshl_add_u32 {v(V_T+4)}, {v(V_L)}, 4, {s(S_T+5)}")
    g("s_nop 7")
    g("s_nop 1")
    for mt in range(2):
        g(f"ds_write_b128 {v(V_T+4)}, {v(QD+4*mt,4)} offset:{mt*1024}")
    g("s_waitcnt lgkmcnt(0)")
    g("s_barrier")

def head_publish():
    R = V_KOP
    g(f"s_lshl_b32 {s(S_T+5)}, {s(S_W)}, 10")
    g(f"s_add_u32 {s(S_T+5)}, {s(S_T+5)}, {L_HBUF}")
    g(f"v_lshl_add_u32 {v(V_T+4)}, {v(V_L)}, 4, {s(S_T+5)}")
    for src in range(8):
        g(f"ds_read_b128 {v(R+4*src,4)}, {v(V_T+4)} offset:{src*2048}")
    g("s_waitcnt lgkmcnt(0)")
    for src in range(1, 8):
        for i in range(4):
            g(f"v_add_f32 {v(R+i)}, {v(R+i)}, {v(R+4*src+i)}")
    g(f"v_cvt_pk_bf16_f32 {v(R+4)}, {v(R+0)}, {v(R+1)}")
    g(f"v_cvt_pk_bf16_f32 {v(R+5)}, {v(R+2)}, {v(R+3)}")
    g(f"v_and_b32 {v(V_T)}, 15, {v(V_L)}")
    g(f"v_lshrrev_b32 {v(V_T+1)}, 4, {v(V_L)}")
    g(f"v_lshlrev_b32 {v(V_T+2)}, 15, {v(V_T+1)}")
    g(f"v_lshl_add_u32 {v(V_T+2)}, {v(V_T)}, 1, {v(V_T+2)}")
    g(f"s_lshl_b32 {s(S_T+5)}, {s(S_W)}, 17")
    g(f"s_add_u32 {s(S_T+5)}, {s(S_T+5)}, {s(S_T+2)}")
    g(f"s_add_u32 {s(S_T+5)}, {s(S_T+5)}, {WS_Q}")
    for i in range(4):
        g(f"s_add_u32 {s(S_T+6)}, {s(S_T+5)}, {i*8192}")
        op = "buffer_store_short" if i % 2 == 0 else "buffer_store_short_d16_hi"
        g.vmem(f"{op} {v(R+4+i//2)}, {v(V_T+2)}, {s(SRD_WS,4)}, {s(S_T+6)} offen sc1", "QST")
    for i in range(4):
        g(f"v_mov_b32 {v(R+8+i)}, -1")
    g(f"v_lshlrev_b32 {v(V_T+3)}, 4, {v(V_L)}")
    g(f"s_mul_i32 {s(S_T+5)}, {s(S_W)}, 6144")
    g(f"s_add_u32 {s(S_T+5)}, {s(S_T+5)}, {s(S_PB)}")
    g(f"s_add_u32 {s(S_T+6)}, {s(S_T+5)}, 4096")
    for i in range(6):
        so = S_T + 5 if i < 4 else S_T + 6
        g.vmem(f"buffer_store_dwordx4 {v(R+8,4)}, {v(V_T+3)}, {s(SRD_WS,4)}, {s(so)} offen offset:{(i&3)*1024} sc1", "QST")
    g.wait_vm0()
    g(f"s_and_b32 {s(S_T+5)}, {s(S_WG)}, 63")
    g(f"s_lshl_b32 {s(S_T+5)}, {s(S_T+5)}, 2")
    g(f"v_mov_b32 {v(V_T)}, 1")
    g(f"v_mov_b32 {v(V_T+1)}, {s(S_T+5)}")
    g(f"s_mov_b64 {s(S_EXS,2)}, exec")
    g("s_mov_b64 exec, 1")
    g.vmem(f"buffer_atomic_add {v(V_T)}, {v(V_T+1)}, {s(SRD_DBG,4)}, 0 offen sc1", "ATOM")
    g(f"s_mov_b64 exec, {s(S_EXS,2)}")
    g.wait_vm0()

def head_poll_and_stage_q():
    g.cmt("wave 0: poll the 64 arrival counters, then stage this wg's Q operand in LDS")
    g(f"s_mov_b32 {s(S_CNT)}, 0")
    g(f"v_lshlrev_b32 {v(V_T+1)}, 2, {v(V_L)}")
    g.lab("L_POLL")
    g(f"buffer_load_dword {v(V_T)}, {v(V_T+1)}, {s(SRD_DBG,4)}, 0 offen sc1")
    g("s_waitcnt vmcnt(0)")
    g(f"v_cmp_ne_u32 vcc, 8, {v(V_T)}")
    g("s_cbranch_vccz L_POLL_DONE")
    g(f"s_add_u32 {s(S_CNT)}, {s(S_CNT)}, 1")
    g(f"s_cmp_lt_u32 {s(S_CNT)}, 0x8000")
    g("s_cbranch_scc0 L_POLL_DONE")
    g("s_sleep 2")
    g("s_branch L_POLL")
    g.lab("L_POLL_DONE")
    stamp(3)
    g(f"v_and_b32 {v(V_T)}, 3, {v(V_L)}")
    g(f"v_lshlrev_b32 {v(V_T)}, 13, {v(V_T)}")
    g(f"v_and_b32 {v(V_T+1)}, 15, {v(V_L)}")
    g(f"v_lshrrev_b32 {v(V_T+1)}, 2, {v(V_T+1)}")
    g(f"v_lshl_add_u32 {v(V_T)}, {v(V_T+1)}, 8, {v(V_T)}")
    g(f"v_lshrrev_b32 {v(V_T+1)}, 4, {v(V_L)}")
    g(f"v_lshl_add_u32 {v(V_T)}, {v(V_T+1)}, 4, {v(V_T)}")
    g(f"s_lshl_b32 {s(S_T+5)}, {s(S_B)}, 15")
    g(f"s_lshl_b32 {s(S_T+6)}, {s(S_HKV)}, 10")
    g(f"s_add_u32 {s(S_T+5)}, {s(S_T+5)}, {s(S_T+6)}")
    g(f"s_add_u32 {s(S_T+5)}, {s(S_T+5)}, {WS_Q}")
    for t in range(4):
        g(f"buffer_load_dwordx4 {v(V_KOP+4*t,4)}, {v(V_T)}, {s(SRD_WS,4)}, {s(S_T+5)} offen offset:{t*64} sc1")
    g("s_waitcnt vmcnt(0)")
    g(f"v_lshlrev_b32 {v(V_T+1)}, 4, {v(V_L)}")
    g(f"v_add_u32 {v(V_T+1)}, {L_QBUF}, {v(V_T+1)}")
    for t in range(4):
        g(f"ds_write_b128 {v(V_T+1)}, {v(V_KOP+4*t,4)} offset:{t*1024}")
    g("s_waitcnt lgkmcnt(0)")

def head_clear_and_tag():
    g(f"s_cmp_ge_u32 {s(S_W)}, 2")
    g("s_cbranch_scc1 L_NOCLR")
    R = V_X
    for i in range(4):
        g(f"v_mov_b32 {v(R+i)}, -1")
    g(f"v_lshlrev_b32 {v(V_T+3)}, 4, {v(V_L)}")
    g(f"s_mul_i32 {s(S_T+5)}, {s(S_W)}, 6144")
    g(f"s_add_u32 {s(S_T+5)}, {s(S_T+5)}, {s(S_PB)}")
    g(f"s_add_u32 {s(S_T+6)}, {s(S_T+5)}, 4096")
    for i in range(6):
        so = S_T + 5 if i < 4 else S_T + 6
        g(f"buffer_store_dwordx4 {v(R,4)}, {v(V_T+3)}, {s(SRD_WS,4)}, {s(so)} offen offset:{(i&3)*1024} sc1")
    g("s_waitcnt vmcnt(0)")
    g(f"s_and_b32 {s(S_T+5)}, {s(S_WG)}, 63")
    g(f"s_lshl_b32 {s(S_T+5)}, {s(S_T+5)}, 2")
    g(f"v_mov_b32 {v(V_T)}, 1")
    g(f"v_mov_b32 {v(V_T+1)}, {s(S_T+5)}")
    g(f"s_mov_b64 {s(S_EXS,2)}, exec")
    g("s_mov_b64 exec, 1")
    g(f"buffer_atomic_add {v(V_T)}, {v(V_T+1)}, {s(SRD_DBG,4)}, 0 offen sc1")
    g(f"s_mov_b64 exec, {s(S_EXS,2)}")
    g("s_waitcnt vmcnt(0)")
    g.lab("L_NOCLR")
    g.vm = []

HQ_WA, HQ_WB = V_KOP, V_X
HQ_XF = V_Q
HQ_TB = V_S
HQ_D = V_O
V_WQOFF, V_XOFF = V_T + 8, V_T + 9

def hq_issue_round(rnd):
    buf = HQ_WA if rnd % 2 == 0 else HQ_WB
    g(f"s_add_u32 {s(S_T+10)}, {s(S_T+8)}, {rnd*64}")
    g.vmem(f"buffer_load_dwordx4 {v(HQ_XF + 4*(rnd%2), 4)}, {v(V_XOFF)}, {s(SRD_X,4)}, {s(S_T+10)} offen", f"R{rnd}")
    for j in range(8):
        g(f"s_add_u32 {s(S_T+10)}, {s(S_T+9)}, {(32*rnd + j)*8192:#x}")
        g.vmem(f"buffer_load_dwordx4 {v(buf + 4*j, 4)}, {v(V_WQOFF)}, {s(SRD_WQ,4)}, {s(S_T+10)} offen", f"R{rnd}")

def hq_compute_round(rnd):
    buf = HQ_WA if rnd % 2 == 0 else HQ_WB
    g.wait_vm(f"R{rnd}")
    for tc in range(8):
        tb = HQ_TB + 4 * (tc % 2)
        sel = S_SELLO if tc % 2 == 0 else S_SELHI
        for p_ in range(4):
            g(f"v_perm_b32 {v(tb+p_)}, {v(buf+(2*p_+1)*4+(tc>>1))}, {v(buf+(2*p_)*4+(tc>>1))}, {s(sel)}")
        g("s_nop 1")
        c = "0" if rnd == 0 else v(HQ_D + 4*tc, 4)
        g(f"v_mfma_f32_16x16x32_bf16 {v(HQ_D+4*tc,4)}, {v(HQ_XF+4*(rnd%2),4)}, {v(tb,4)}, {c}")

def head():
    head_clear_and_tag()
    g(f"v_lshrrev_b32 {v(V_T)}, 4, {v(V_L)}")
    g(f"v_and_b32 {v(V_T+1)}, 15, {v(V_L)}")
    g(f"v_lshlrev_b32 {v(V_WQOFF)}, 16, {v(V_T)}")
    g(f"v_lshl_add_u32 {v(V_WQOFF)}, {v(V_T+1)}, 4, {v(V_WQOFF)}")
    g(f"v_and_b32 {v(V_T+1)}, 3, {v(V_L)}")
    g(f"v_lshlrev_b32 {v(V_XOFF)}, 10, {v(V_T+1)}")
    g(f"v_lshl_add_u32 {v(V_XOFF)}, {v(V_T)}, 4, {v(V_XOFF)}")
    g(f"s_and_b32 {s(S_T)}, {s(S_W)}, 1")
    g(f"s_lshl_b32 {s(S_T+8)}, {s(S_B)}, 12")
    g(f"s_lshl_b32 {s(S_T+1)}, {s(S_T)}, 9")
    g(f"s_add_u32 {s(S_T+8)}, {s(S_T+8)}, {s(S_T+1)}")
    g(f"s_lshl_b32 {s(S_T+9)}, {s(S_T)}, 21")
    g(f"s_lshl_b32 {s(S_T+1)}, {s(S_HKV)}, 10")
    g(f"s_add_u32 {s(S_T+9)}, {s(S_T+9)}, {s(S_T+1)}")
    g(f"s_lshr_b32 {s(S_T+1)}, {s(S_W)}, 1")
    g(f"s_lshl_b32 {s(S_T+1)}, {s(S_T+1)}, 8")
    g(f"s_add_u32 {s(S_T+9)}, {s(S_T+9)}, {s(S_T+1)}")
    hq_issue_round(0)
    hq_issue_round(1)
    issue_K(0); issue_V(0)
    for rnd in range(8):
        hq_compute_round(rnd)
        if rnd + 2 < 8:
            g("s_nop 4")
            hq_issue_round(rnd + 2)
        if rnd == 2:
            issue_K(1)
        if rnd == 4:
            issue_WO()
    g(f"s_lshl_b32 {s(S_T)}, {s(S_W)}, 11")
    g(f"s_and_b32 {s(S_T+1)}, {s(S_W)}, 1")
    g(f"s_lshl_b32 {s(S_T+1)}, {s(S_T+1)}, 13")
    g(f"s_lshr_b32 {s(S_T+2)}, {s(S_W)}, 1")
    g(f"s_lshl_b32 {s(S_T+2)}, {s(S_T+2)}, 11")
    g(f"s_add_u32 {s(S_T)}, {s(S_T+1)}, {s(S_T+2)}")
    g(f"s_add_u32 {s(S_T)}, {s(S_T)}, {L_HBUF}")
    g(f"v_lshl_add_u32 {v(V_T)}, {v(V_L)}, 5, {s(S_T)}")
    g("s_nop 7")
    g("s_nop 1")
    g(f"s_mov_b64 {s(S_EXS,2)}, exec")
    g("s_mov_b64 exec, 0xffff")
    for tc in range(8):
        for i in range(4):
            g(f"ds_write_b32 {v(V_T)}, {v(HQ_D+4*tc+i)} offset:{i*512 + tc*4}")
    g(f"s_mov_b64 exec, {s(S_EXS,2)}")
    g("s_waitcnt lgkmcnt(0)")
    g("s_barrier")
    g(f"v_and_b32 {v(V_T)}, 15, {v(V_L)}")
    g(f"v_lshrrev_b32 {v(V_T+1)}, 2, {v(V_T)}")
    g(f"v_lshlrev_b32 {v(V_T+1)}, 11, {v(V_T+1)}")
    g(f"v_and_b32 {v(V_T)}, 3, {v(V_T)}")
    g(f"v_lshl_add_u32 {v(V_T+1)}, {v(V_T)}, 9, {v(V_T+1)}")
    g(f"v_lshrrev_b32 {v(V_T)}, 4, {v(V_L)}")
    g(f"v_lshl_add_u32 {v(V_T+1)}, {v(V_T)}, 5, {v(V_T+1)}")
    g(f"v_add_u32 {v(V_T+1)}, {L_HBUF}, {v(V_T+1)}")
    QT = V_KOP
    for t in range(4):
        for kh in range(2):
            g(f"ds_read_b128 {v(QT+8*kh,4)}, {v(V_T+1)} offset:{kh*8192 + t*128}")
            g(f"ds_read_b128 {v(QT+8*kh+4,4)}, {v(V_T+1)} offset:{kh*8192 + t*128 + 16}")
        g("s_waitcnt lgkmcnt(0)")
        for i in range(8):
            g(f"v_add_f32 {v(QT+i)}, {v(QT+i)}, {v(QT+8+i)}")
        for p_ in range(4):
            g(f"v_cvt_pk_bf16_f32 {v(V_Q+4*t+p_)}, {v(QT+2*p_)}, {v(QT+2*p_+1)}")

def check_arrivals():
    g(f"s_cmp_lg_u32 {s(S_W)}, 0")
    g("s_cbranch_scc1 L_ARR_OK")
    g(f"s_mov_b32 {s(S_CNT)}, 0")
    g(f"v_lshlrev_b32 {v(V_T+6)}, 2, {v(V_L)}")
    g.lab("L_ARR")
    g(f"buffer_load_dword {v(V_T+5)}, {v(V_T+6)}, {s(SRD_DBG,4)}, 0 offen sc1")
    g("s_waitcnt vmcnt(0)")
    g(f"v_cmp_ne_u32 vcc, 8, {v(V_T+5)}")
    g("s_cbranch_vccz L_ARR_OK")
    g(f"s_add_u32 {s(S_CNT)}, {s(S_CNT)}, 1")
    g(f"s_cmp_lt_u32 {s(S_CNT)}, 0x8000")
    g("s_cbranch_scc0 L_ARR_OK")
    g("s_sleep 8")
    g("s_branch L_ARR")
    g.lab("L_ARR_OK")
    g.vm = []

def softmax_block():
    t0, t1, mn, al, nm = V_T + 0, V_T + 1, V_T + 2, V_T + 3, V_T + 4
    S = V_S
    g(f"v_max3_f32 {v(t0)}, {v(S+0)}, {v(S+1)}, {v(S+2)}")
    g(f"v_max3_f32 {v(t0)}, {v(t0)}, {v(S+3)}, {v(S+4)}")
    g(f"v_max3_f32 {v(t0)}, {v(t0)}, {v(S+5)}, {v(S+6)}")
    g(f"v_max_f32 {v(t0)}, {v(t0)}, {v(S+7)}")
    xmax_g(t0, t1)
    g(f"v_max_f32 {v(mn)}, {v(V_M)}, {v(t0)}")
    g(f"v_sub_f32 {v(al)}, {v(V_M)}, {v(mn)}")
    g(f"v_mul_f32 {v(al)}, {s(S_C)}, {v(al)}")
    g(f"v_exp_f32 {v(al)}, {v(al)}")
    g(f"v_mul_f32 {v(nm)}, {s(S_NC)}, {v(mn)}")
    for i in range(8):
        g(f"v_fma_f32 {v(S+i)}, {v(S+i)}, {s(S_C)}, {v(nm)}")
    for i in range(8):
        g(f"v_exp_f32 {v(S+i)}, {v(S+i)}")
    g(f"v_mov_b32 {v(V_M)}, {v(mn)}")
    g(f"v_mul_f32 {v(V_LS)}, {v(V_LS)}, {v(al)}")
    for i in range(8):
        g(f"v_add_f32 {v(V_LS)}, {v(V_LS)}, {v(S+i)}")
    for i in range(32):
        g(f"v_mul_f32 {v(V_O+i)}, {v(V_O+i)}, {v(al)}")
    for p_ in range(4):
        g(f"v_cvt_pk_bf16_f32 {v(V_P+p_)}, {v(S+2*p_)}, {v(S+2*p_+1)}")

def main_loop():
    g.cmt("---- main: 4 blocks of 32 keys per wave")
    g(f"v_mov_b32 {v(V_M)}, 0xff800000")
    g(f"v_mov_b32 {v(V_LS)}, 0")
    for i in range(32):
        g(f"v_mov_b32 {v(V_O+i)}, 0")
    for it in range(4):
        sl = it & 1
        g.wait_vm(f"K{it}")
        for T in range(2):
            for t in range(4):
                g(f"ds_read_b128 {v(V_KOP + (T*4+t)*4, 4)}, {v(V_KRD+t)} offset:{sl*8192 + T*4096}")
        g("s_waitcnt lgkmcnt(0)")
        if it + 2 < 4:
            issue_K(it + 2)
        for T in range(2):
            for t in range(4):
                c = "0" if t == 0 else v(V_S + 4*T, 4)
                g(f"v_mfma_f32_16x16x32_bf16 {v(V_S+4*T,4)}, {v(V_KOP+(T*4+t)*4,4)}, {v(V_Q+4*t,4)}, {c}")
        g("s_nop 7")
        g("s_nop 1")
        softmax_block()
        g.wait_vm(f"V{it}")
        for t in range(8):
            for p_ in range(4):
                sel = S_SELLO if t % 2 == 0 else S_SELHI
                g(f"v_perm_b32 {v(V_KOP+4*t+p_)}, {v(V_VIN+(2*p_+1)*4+(t>>1))}, {v(V_VIN+(2*p_)*4+(t>>1))}, {s(sel)}")
        if it + 1 < 4:
            issue_V(it + 1)
        g("s_nop 1")
        for t in range(8):
            g(f"v_mfma_f32_16x16x32_bf16 {v(V_O+4*t,4)}, {v(V_KOP+4*t,4)}, {v(V_P,4)}, {v(V_O+4*t,4)}")

def t1_combine_publish():
    g.cmt("---- T1: in-workgroup combine through LDS")
    g(f"s_lshl_b32 {s(S_T)}, {s(S_W)}, 9")
    g(f"s_add_u32 {s(S_T)}, {s(S_T)}, {L_ML}")
    g(f"v_lshl_add_u32 {v(V_T)}, {v(V_L)}, 3, {s(S_T)}")
    g(f"ds_write_b64 {v(V_T)}, {v(V_M,2)}")
    g(f"v_lshl_add_u32 {v(V_T+1)}, {v(V_L)}, 4, {s(S_RING)}")
    g("s_nop 7")
    g("s_nop 1")
    for t in range(8):
        g(f"ds_write_b128 {v(V_T+1)}, {v(V_O+4*t,4)} offset:{t*1024}")
    g("s_waitcnt lgkmcnt(0)")
    g("s_barrier")
    ML, OB, F = V_KOP, V_VIN, V_X
    g(f"v_lshlrev_b32 {v(V_T)}, 3, {v(V_L)}")
    g(f"v_add_u32 {v(V_T)}, {L_ML}, {v(V_T)}")
    for w2 in range(8):
        g(f"ds_read_b64 {v(ML+2*w2,2)}, {v(V_T)} offset:{w2*512}")
    g(f"s_lshl_b32 {s(S_T)}, {s(S_W)}, 10")
    g(f"v_lshl_add_u32 {v(V_T+1)}, {v(V_L)}, 4, {s(S_T)}")
    g(f"v_add_u32 {v(V_T+2)}, 0x10000, {v(V_T+1)}")
    for w2 in range(8):
        a = V_T + 1 if w2 < 4 else V_T + 2
        g(f"ds_read_b128 {v(OB+4*w2,4)}, {v(a)} offset:{(w2&3)*16384}")
    g("s_waitcnt lgkmcnt(0)")
    Mx, Lp, tmp = V_T + 3, V_T + 4, V_T + 5
    g(f"v_max3_f32 {v(Mx)}, {v(ML+0)}, {v(ML+2)}, {v(ML+4)}")
    g(f"v_max3_f32 {v(Mx)}, {v(Mx)}, {v(ML+6)}, {v(ML+8)}")
    g(f"v_max3_f32 {v(Mx)}, {v(Mx)}, {v(ML+10)}, {v(ML+12)}")
    g(f"v_max_f32 {v(Mx)}, {v(Mx)}, {v(ML+14)}")
    for w2 in range(8):
        g(f"v_sub_f32 {v(F+w2)}, {v(ML+2*w2)}, {v(Mx)}")
        g(f"v_mul_f32 {v(F+w2)}, {s(S_C)}, {v(F+w2)}")
        g(f"v_exp_f32 {v(F+w2)}, {v(F+w2)}")
    g("s_nop 0")
    g(f"v_mul_f32 {v(Lp)}, {v(F+0)}, {v(ML+1)}")
    for w2 in range(1, 8):
        g(f"v_fma_f32 {v(Lp)}, {v(F+w2)}, {v(ML+2*w2+1)}, {v(Lp)}")
    xsum_g(Lp, tmp)
    OO = V_X + 8
    for i in range(4):
        g(f"v_mul_f32 {v(OO+i)}, {v(F+0)}, {v(OB+i)}")
    for w2 in range(1, 8):
        for i in range(4):
            g(f"v_fma_f32 {v(OO+i)}, {v(F+w2)}, {v(OB+4*w2+i)}, {v(OO+i)}")
    for i in range(4):
        g(f"v_min_u32 {v(OO+i)}, -2, {v(OO+i)}")
    g(f"s_lshl_b32 {s(S_T)}, {s(S_W)}, 10")
    g(f"s_add_u32 {s(S_T)}, {s(S_T)}, {s(S_PB)}")
    g.vmem(f"buffer_store_dwordx4 {v(OO,4)}, {v(V_VOFF)}, {s(SRD_WS,4)}, {s(S_T)} offen sc1", "PUB")
    g(f"s_cmp_lg_u32 {s(S_W)}, 0")
    g("s_cbranch_scc1 L_T1_NOSTAT")
    g(f"v_min_u32 {v(OO+4)}, -2, {v(Mx)}")
    g(f"v_min_u32 {v(OO+5)}, -2, {v(Lp)}")
    g(f"v_lshlrev_b32 {v(V_T)}, 3, {v(V_L)}")
    g(f"s_add_u32 {s(S_T)}, {s(S_PB)}, {PB_ML}")
    g(f"s_mov_b64 {s(S_EXS,2)}, exec")
    g("s_mov_b64 exec, 0xffff")
    g(f"buffer_store_dwordx2 {v(OO+4,2)}, {v(V_T)}, {s(SRD_WS,4)}, {s(S_T)} offen sc1")
    g(f"s_mov_b64 exec, {s(S_EXS,2)}")
    g.lab("L_T1_NOSTAT")
    g.vm.append("PUB")

def umax_chain(regs, dst):
    regs = list(regs)
    g(f"v_max3_u32 {v(dst)}, {v(regs[0])}, {v(regs[1])}, {v(regs[2])}")
    i = 3
    while i < len(regs):
        if i + 1 < len(regs):
            g(f"v_max3_u32 {v(dst)}, {v(dst)}, {v(regs[i])}, {v(regs[i+1])}"); i += 2
        else:
            g(f"v_max_u32 {v(dst)}, {v(dst)}, {v(regs[i])}"); i += 1

def poll_tail(name, issue_loads, regs, tmp):
    g(f"s_mov_b32 {s(S_CNT)}, 0")
    g.lab(f"L_{name}_RETRY")
    issue_loads()
    g("s_waitcnt vmcnt(0)")
    umax_chain(regs, tmp)
    g(f"v_cmp_eq_u32 vcc, -1, {v(tmp)}")
    g(f"s_cbranch_vccz L_{name}_OK")
    g(f"s_add_u32 {s(S_CNT)}, {s(S_CNT)}, 1")
    g(f"s_cmp_lt_u32 {s(S_CNT)}, 0x8000")
    g(f"s_cbranch_scc0 L_{name}_OK")
    g("s_sleep 8")
    g(f"s_branch L_{name}_RETRY")
    g.lab(f"L_{name}_OK")
    g.vm = []

def t3_t4():
    g.cmt("---- T3: gather the 4 split partials of (b,hkv); wave = (hq = w>>1, th = w&1)")
    DD = [V_VIN, V_VIN + 16, V_KOP, V_KOP + 16]
    ST = V_X
    g(f"v_lshrrev_b32 {v(V_T)}, 4, {v(V_L)}")
    g(f"v_and_b32 {v(V_T+1)}, 3, {v(V_L)}")
    g(f"v_lshl_add_u32 {v(V_T)}, {v(V_T)}, 4, {v(V_T+1)}")
    g(f"v_lshlrev_b32 {v(V_T)}, 4, {v(V_T)}")
    g(f"v_lshlrev_b32 {v(V_T+1)}, 3, {v(V_T+1)}")
    g(f"s_and_b32 {s(S_T)}, {s(S_WG)}, 0xfc")
    g(f"s_mul_i32 {s(S_T)}, {s(S_T)}, {PB_SZ}")
    g(f"s_add_u32 {s(S_T)}, {s(S_T)}, {WS_PB:#x}")
    g(f"s_lshr_b32 {s(S_T+1)}, {s(S_W)}, 1")
    g(f"s_and_b32 {s(S_T+2)}, {s(S_W)}, 1")
    g(f"s_lshl_b32 {s(S_T+3)}, {s(S_T+1)}, 6")
    g(f"s_lshl_b32 {s(S_T+4)}, {s(S_T+2)}, 12")
    g(f"s_add_u32 {s(S_T+3)}, {s(S_T+3)}, {s(S_T+4)}")
    g(f"s_lshl_b32 {s(S_T+4)}, {s(S_T+1)}, 5")
    g(f"s_add_u32 {s(S_T+4)}, {s(S_T+4)}, {PB_ML}")
    for sp2 in range(4):
        g(f"s_add_u32 {s(S_T+8+sp2)}, {s(S_T)}, {sp2*PB_SZ}")
        g(f"s_add_u32 {s(S_T+12+sp2)}, {s(S_T+8+sp2)}, {s(S_T+4)}")
        g(f"s_add_u32 {s(S_T+8+sp2)}, {s(S_T+8+sp2)}, {s(S_T+3)}")
    def loads():
        for sp2 in range(4):
            for tt in range(4):
                g(f"buffer_load_dwordx4 {v(DD[sp2]+4*tt,4)}, {v(V_T)}, {s(SRD_WS,4)}, {s(S_T+8+sp2)} offen offset:{tt*1024} sc1")
            g(f"buffer_load_dwordx2 {v(ST+2*sp2,2)}, {v(V_T+1)}, {s(SRD_WS,4)}, {s(S_T+12+sp2)} offen sc1")
    regs = [DD[sp2] + k for sp2 in range(4) for k in range(16)] + [ST + k for k in range(8)]
    poll_tail("T3", loads, regs, V_T + 2)
    stamp(6)
    Mx, den, E = V_T + 2, V_T + 3, V_X + 8
    g(f"v_max3_f32 {v(Mx)}, {v(ST+0)}, {v(ST+2)}, {v(ST+4)}")
    g(f"v_max_f32 {v(Mx)}, {v(Mx)}, {v(ST+6)}")
    for sp2 in range(4):
        g(f"v_sub_f32 {v(E+sp2)}, {v(ST+2*sp2)}, {v(Mx)}")
        g(f"v_mul_f32 {v(E+sp2)}, {s(S_C)}, {v(E+sp2)}")
        g(f"v_exp_f32 {v(E+sp2)}, {v(E+sp2)}")
    g("s_nop 0")
    g(f"v_mul_f32 {v(den)}, {v(E+0)}, {v(ST+1)}")
    for sp2 in range(1, 4):
        g(f"v_fma_f32 {v(den)}, {v(E+sp2)}, {v(ST+2*sp2+1)}, {v(den)}")
    g(f"v_rcp_f32 {v(den)}, {v(den)}")
    g("s_nop 0")
    for sp2 in range(4):
        g(f"v_mul_f32 {v(E+sp2)}, {v(E+sp2)}, {v(den)}")
    OV = V_X + 12
    for tt in range(4):
        for i in range(4):
            g(f"v_mul_f32 {v(OV+4*tt+i)}, {v(E+0)}, {v(DD[0]+4*tt+i)}")
            for sp2 in range(1, 4):
                g(f"v_fma_f32 {v(OV+4*tt+i)}, {v(E+sp2)}, {v(DD[sp2]+4*tt+i)}, {v(OV+4*tt+i)}")
    A = V_S
    for u in range(2):
        g(f"v_cvt_pk_bf16_f32 {v(A+4*u+0)}, {v(OV+8*u+0)}, {v(OV+8*u+1)}")
        g(f"v_cvt_pk_bf16_f32 {v(A+4*u+1)}, {v(OV+8*u+2)}, {v(OV+8*u+3)}")
        g(f"v_cvt_pk_bf16_f32 {v(A+4*u+2)}, {v(OV+8*u+4)}, {v(OV+8*u+5)}")
        g(f"v_cvt_pk_bf16_f32 {v(A+4*u+3)}, {v(OV+8*u+6)}, {v(OV+8*u+7)}")
    if STOP == "t3dump":
        return
    WT = V_KOP
    for u in range(2):
        for tc in range(8):
            for p_ in range(4):
                sel = S_SELLO if tc % 2 == 0 else S_SELHI
                g(f"v_perm_b32 {v(WT+(u*8+tc)*4+p_)}, {v(V_WRAW+(u*8+2*p_+1)*4+(tc>>1))}, {v(V_WRAW+(u*8+2*p_)*4+(tc>>1))}, {s(sel)}")
    g("s_nop 1")
    DT = V_O
    for tc in range(8):
        g(f"v_mfma_f32_16x16x32_bf16 {v(DT+4*tc,4)}, {v(A,4)}, {v(WT+tc*4,4)}, 0")
        g(f"v_mfma_f32_16x16x32_bf16 {v(DT+4*tc,4)}, {v(A+4,4)}, {v(WT+(8+tc)*4,4)}, {v(DT+4*tc,4)}")
    g(f"v_lshl_add_u32 {v(V_T+1)}, {v(V_L)}, 4, {s(S_RING)}")
    g("s_nop 7")
    g("s_nop 1")
    for tc in range(8):
        g(f"ds_write_b128 {v(V_T+1)}, {v(DT+4*tc,4)} offset:{8192 + tc*1024}")
    g("s_waitcnt lgkmcnt(0)")
    g("s_barrier")
    RB = V_VIN
    g(f"s_lshl_b32 {s(S_T)}, {s(S_W)}, 10")
    g(f"s_add_u32 {s(S_T)}, {s(S_T)}, 8192")
    g(f"v_lshl_add_u32 {v(V_T+1)}, {v(V_L)}, 4, {s(S_T)}")
    g(f"v_add_u32 {v(V_T+2)}, 0x10000, {v(V_T+1)}")
    for w2 in range(8):
        a = V_T + 1 if w2 < 4 else V_T + 2
        g(f"ds_read_b128 {v(RB+4*w2,4)}, {v(a)} offset:{(w2&3)*16384}")
    g("s_waitcnt lgkmcnt(0)")
    for w2 in range(1, 8):
        for i in range(4):
            g(f"v_add_f32 {v(RB+i)}, {v(RB+i)}, {v(RB+4*w2+i)}")
    for i in range(4):
        g(f"v_min_u32 {v(RB+i)}, -2, {v(RB+i)}")
    g(f"s_lshl_b32 {s(S_T)}, {s(S_W)}, 8")
    g(f"s_add_u32 {s(S_T)}, {s(S_T)}, {s(S_PB)}")
    g(f"s_add_u32 {s(S_T)}, {s(S_T)}, {PB_OUT}")
    g(f"s_mov_b64 {s(S_EXS,2)}, exec")
    g("s_mov_b64 exec, 0xffff")
    g.vmem(f"buffer_store_dwordx4 {v(RB,4)}, {v(V_VOFF)}, {s(SRD_WS,4)}, {s(S_T)} offen sc1", "PUB2")
    g(f"s_mov_b64 exec, {s(S_EXS,2)}")

def final_reduce():
    g.cmt("---- final: wg with hkv == b sums the 8 KV-head partials of (b, sp) in fixed order, writes bf16")
    g(f"s_cmp_lg_u32 {s(S_HKV)}, {s(S_B)}")
    g("s_cbranch_scc1 L_END")
    g("s_mov_b64 exec, 0xffff")
    FB = V_VIN
    g(f"s_lshl_b32 {s(S_T)}, {s(S_B)}, 5")
    g(f"s_add_u32 {s(S_T)}, {s(S_T)}, {s(S_SP)}")
    g(f"s_mul_i32 {s(S_T)}, {s(S_T)}, {PB_SZ}")
    g(f"s_add_u32 {s(S_T)}, {s(S_T)}, {WS_PB + PB_OUT:#x}")
    g(f"s_lshl_b32 {s(S_T+1)}, {s(S_W)}, 8")
    g(f"s_add_u32 {s(S_T)}, {s(S_T)}, {s(S_T+1)}")
    for h2 in range(8):
        g(f"s_add_u32 {s(S_T+8+h2)}, {s(S_T)}, {h2*4*PB_SZ:#x}")
    def loads():
        for h2 in range(8):
            g(f"buffer_load_dwordx4 {v(FB+4*h2,4)}, {v(V_VOFF)}, {s(SRD_WS,4)}, {s(S_T+8+h2)} offen sc1")
    poll_tail("FIN", loads, [FB + k for k in range(32)], V_T + 2)
    for h2 in range(1, 8):
        for i in range(4):
            g(f"v_add_f32 {v(FB+i)}, {v(FB+i)}, {v(FB+4*h2+i)}")
    g(f"v_cvt_pk_bf16_f32 {v(FB+4)}, {v(FB+0)}, {v(FB+1)}")
    g(f"v_cvt_pk_bf16_f32 {v(FB+5)}, {v(FB+2)}, {v(FB+3)}")
    g(f"v_lshlrev_b32 {v(V_T)}, 4, {v(V_L)}")
    g(f"s_lshl_b32 {s(S_T)}, {s(S_B)}, 12")
    g(f"s_lshl_b32 {s(S_T+1)}, {s(S_SP)}, 8")
    g(f"s_add_u32 {s(S_T)}, {s(S_T)}, {s(S_T+1)}")
    g(f"s_lshl_b32 {s(S_T+1)}, {s(S_W)}, 1")
    g(f"s_add_u32 {s(S_T)}, {s(S_T)}, {s(S_T+1)}")
    for s_ in range(4):
        g(f"s_add_u32 {s(S_T+1)}, {s(S_T)}, {s_*1024}")
        op = "buffer_store_short" if s_ % 2 == 0 else "buffer_store_short_d16_hi"
        g(f"{op} {v(FB+4+s_//2)}, {v(V_T)}, {s(SRD_OUT,4)}, {s(S_T+1)} offen")
    g("s_mov_b64 exec, -1")

def k1_publish():
    R = V_KOP
    g(f"s_cmp_ge_u32 {s(S_W)}, 2")
    g("s_cbranch_scc1 L_END")
    g(f"s_lshl_b32 {s(S_T+5)}, {s(S_W)}, 10")
    g(f"s_add_u32 {s(S_T+5)}, {s(S_T+5)}, {L_HBUF}")
    g(f"v_lshl_add_u32 {v(V_T+4)}, {v(V_L)}, 4, {s(S_T+5)}")
    for src in range(8):
        g(f"ds_read_b128 {v(R+4*src,4)}, {v(V_T+4)} offset:{src*2048}")
    g("s_waitcnt lgkmcnt(0)")
    for src in range(1, 8):
        for i in range(4):
            g(f"v_add_f32 {v(R+i)}, {v(R+i)}, {v(R+4*src+i)}")
    g(f"v_cvt_pk_bf16_f32 {v(R+4)}, {v(R+0)}, {v(R+1)}")
    g(f"v_cvt_pk_bf16_f32 {v(R+5)}, {v(R+2)}, {v(R+3)}")
    g(f"v_and_b32 {v(V_T)}, 15, {v(V_L)}")
    g(f"v_lshrrev_b32 {v(V_T+1)}, 4, {v(V_L)}")
    g(f"v_lshlrev_b32 {v(V_T+2)}, 15, {v(V_T+1)}")
    g(f"v_lshl_add_u32 {v(V_T+2)}, {v(V_T)}, 1, {v(V_T+2)}")
    g(f"s_lshl_b32 {s(S_T+5)}, {s(S_W)}, 17")
    g(f"s_add_u32 {s(S_T+5)}, {s(S_T+5)}, {s(S_T+2)}")
    g(f"s_add_u32 {s(S_T+5)}, {s(S_T+5)}, {WS_Q}")
    for i in range(4):
        g(f"s_add_u32 {s(S_T+6)}, {s(S_T+5)}, {i*8192}")
        op = "buffer_store_short" if i % 2 == 0 else "buffer_store_short_d16_hi"
        g(f"{op} {v(R+4+i//2)}, {v(V_T+2)}, {s(SRD_WS,4)}, {s(S_T+6)} offen")
    for i in range(4):
        g(f"v_mov_b32 {v(R+8+i)}, -1")
    g(f"v_lshlrev_b32 {v(V_T+3)}, 4, {v(V_L)}")
    g(f"s_mul_i32 {s(S_T+5)}, {s(S_W)}, 6144")
    g(f"s_add_u32 {s(S_T+5)}, {s(S_T+5)}, {s(S_PB)}")
    g(f"s_add_u32 {s(S_T+6)}, {s(S_T+5)}, 4096")
    for i in range(6):
        so = S_T + 5 if i < 4 else S_T + 6
        g(f"buffer_store_dwordx4 {v(R+8,4)}, {v(V_T+3)}, {s(SRD_WS,4)}, {s(so)} offen offset:{(i&3)*1024}")

def k2_load_q():
    g(f"v_and_b32 {v(V_T)}, 3, {v(V_L)}")
    g(f"v_lshlrev_b32 {v(V_T)}, 13, {v(V_T)}")
    g(f"v_and_b32 {v(V_T+1)}, 15, {v(V_L)}")
    g(f"v_lshrrev_b32 {v(V_T+1)}, 2, {v(V_T+1)}")
    g(f"v_lshl_add_u32 {v(V_T)}, {v(V_T+1)}, 8, {v(V_T)}")
    g(f"v_lshrrev_b32 {v(V_T+1)}, 4, {v(V_L)}")
    g(f"v_lshl_add_u32 {v(V_T)}, {v(V_T+1)}, 4, {v(V_T)}")
    g(f"s_lshl_b32 {s(S_T+5)}, {s(S_B)}, 15")
    g(f"s_lshl_b32 {s(S_T+6)}, {s(S_HKV)}, 10")
    g(f"s_add_u32 {s(S_T+5)}, {s(S_T+5)}, {s(S_T+6)}")
    g(f"s_add_u32 {s(S_T+5)}, {s(S_T+5)}, {WS_Q}")
    for t in range(4):
        g.vmem(f"buffer_load_dwordx4 {v(V_Q+4*t,4)}, {v(V_T)}, {s(SRD_WS,4)}, {s(S_T+5)} offen offset:{t*64}", "Q")

def kernel_text(name, body, nvgpr):
    t = [f".globl {name}", ".p2align 8", f".type {name},@function", f"{name}:"] + body
    d = f""".section .rodata,"a"
.p2align 6
.amdhsa_kernel {name}
  .amdhsa_next_free_vgpr {nvgpr}
  .amdhsa_next_free_sgpr 96
  .amdhsa_accum_offset {nvgpr}
  .amdhsa_group_segment_fixed_size 0
  .amdhsa_kernarg_size 64
  .amdhsa_user_sgpr_count 2
  .amdhsa_user_sgpr_kernarg_segment_ptr 1
  .amdhsa_system_sgpr_workgroup_id_x 1
.end_amdhsa_kernel
.text"""
    return "\n".join(t) + "\n", d + "\n"

def emit(kernels):
    ref = "standalone__gqa_block_cached__sampling.s.ref"
    import os
    hdr = open(ref).read().split("; Override launch geometry")[0].rstrip("\n") if os.path.exists(ref) else ""
    text = [hdr]
    for name, body, nvgpr, lds in kernels:
        text.append(f"; @launch kernel={name} grid=({NWG},1,1) block=({NW*64},1,1) lds={lds}")
    text.append('.amdgcn_target "amdgcn-amd-amdhsa--gfx950"')
    text.append(".text")
    code, desc = "", ""
    for name, body, nvgpr, lds in kernels:
        c, d = kernel_text(name, body, nvgpr)
        code += c; desc += d
    desc = desc.replace("\n.text\n", "\n", desc.count("\n.text\n"))
    open(OUT, "w").write("\n".join(text) + "\n" + code + desc)

if __name__ == "__main__":
    prologue()
    head_issue_loads()
    head_mfma_and_stage()
    k1_publish()
    g.lab("L_END")
    end_kernel()
    body1 = [ln.replace("L_END", "L_END1") for ln in g.l]
    g.l = []; g.vm = []
    prologue()
    stamp(0)
    k2_load_q()
    issue_K(0); issue_V(0); issue_K(1); issue_WO()
    g.wait_vm("Q")
    stamp(4)
    main_loop()
    stamp(5)
    t1_combine_publish()
    t3_t4()
    stamp(7)
    if STAMP:
        stamp_flush(8)
    final_reduce()
    g.lab("L_END")
    end_kernel()
    body2 = list(g.l)
    emit([("qproj_kernel", body1, 128, 32768),
          ("standalone__gqa_block_cached__sampling_kernel", body2, NVGPR, LDS_BYTES)])
```

```python
import sys

STOP = sys.argv[2] if len(sys.argv) > 2 else "none"
import os
WOPOL = os.environ.get("WOPOL", "nt")
LOCK = os.environ.get("LOCK", "0") == "1"
SLEEP = int(os.environ.get("SLEEP", "1"))
PACE = int(sys.argv[4]) if len(sys.argv) > 4 else 4
STAMP = len(sys.argv) > 3 and sys.argv[3] == "stamp"
OUT = sys.argv[1] if len(sys.argv) > 1 else "standalone__gqa_block_cached__sampling.s"

NWG = 256
NW = 8
KV_BYTES = 8 * 8 * 4096 * 128 * 2
WQ_BYTES = 512 * 4096 * 2
WO_BYTES = 4096 * 512 * 2
X_BYTES = 8 * 4 * 512 * 2
OUT_BYTES = 8 * 4 * 512 * 2
WS_BYTES = 268435456
WS_Q = 0
WS_PB = 0x100000
PB_SZ = 12288
PB_O = 0
PB_ML = 8192
PB_OUT = 10240
L_RING = 0
L_HBUF = 0
L_ML = 151552
LDS_BYTES = 163840
SOFTMAX_C = 0.12751743011326107

import struct
def f2u(x): return struct.unpack("<I", struct.pack("<f", x))[0]


class G:
    def __init__(self):
        self.l = []
        self.vm = []
        self.pace = 0
    def __call__(self, s): self.l.append("    " + s)
    def lab(self, s): self.l.append(s + ":")
    def cmt(self, s): self.l.append("    ; " + s)
    def vmem(self, s, tag):
        if self.pace and len(self.vm) >= self.pace:
            n = self.pace - 1
            self(f"s_waitcnt vmcnt({n})")
            self.vm = self.vm[len(self.vm) - n:] if n else []
        self(s); self.vm.append(tag)
    def wait_vm(self, tag):
        if tag not in self.vm:
            return
        idx = max(i for i, t in enumerate(self.vm) if t == tag)
        n = len(self.vm) - 1 - idx
        assert n <= 63
        self(f"s_waitcnt vmcnt({n})")
        self.vm = self.vm[idx + 1:]
    def wait_vm0(self):
        self("s_waitcnt vmcnt(0)"); self.vm = []

def v(a, n=1): return f"v{a}" if n == 1 else f"v[{a}:{a+n-1}]"
def s(a, n=1): return f"s{a}" if n == 1 else f"s[{a}:{a+n-1}]"

g = G()

S_WG = 2
S_PTR = 4
SRD_X, SRD_K, SRD_V, SRD_WQ, SRD_WO, SRD_OUT, SRD_DBG, SRD_WS = 20, 24, 28, 32, 36, 40, 44, 48
S_B, S_HKV, S_SP, S_W = 52, 53, 54, 55
S_RING = 56
S_KVB = 57
S_PB = 58
S_C, S_NC, S_SELLO, S_SELHI = 60, 61, 62, 63
S_T = 64
S_CNT = 80
S_EXS = 82
V_TID = 0
V_L = 1
V_T = 2
V_KSRC = 20
V_KRD = 24
V_VOFF = 28
V_M, V_LS = 30, 31
V_Q = 32
V_O = 48
V_KOP = 80
V_VIN = 112
V_S = 144
V_P = 152
V_WRAW = 156
V_X = 220
NVGPR = 256

def srd(base, ptr, nbytes):
    g(f"s_mov_b32 {s(base)}, {s(ptr)}")
    g(f"s_mov_b32 {s(base+1)}, {s(ptr+1)}")
    g(f"s_mov_b32 {s(base+2)}, {nbytes:#x}")
    g(f"s_mov_b32 {s(base+3)}, 0x00020000")

def xmax_g(val, tmp):
    g(f"v_mov_b32 {v(tmp)}, {v(val)}")
    g("s_nop 1")
    g(f"v_permlane16_swap_b32 {v(val)}, {v(tmp)}")
    g("s_nop 1")
    g(f"v_max_f32 {v(val)}, {v(val)}, {v(tmp)}")
    g(f"v_mov_b32 {v(tmp)}, {v(val)}")
    g("s_nop 1")
    g(f"v_permlane32_swap_b32 {v(val)}, {v(tmp)}")
    g("s_nop 1")
    g(f"v_max_f32 {v(val)}, {v(val)}, {v(tmp)}")

def xsum_g(val, tmp):
    g(f"v_mov_b32 {v(tmp)}, {v(val)}")
    g("s_nop 1")
    g(f"v_permlane16_swap_b32 {v(val)}, {v(tmp)}")
    g("s_nop 1")
    g(f"v_add_f32 {v(val)}, {v(val)}, {v(tmp)}")
    g(f"v_mov_b32 {v(tmp)}, {v(val)}")
    g("s_nop 1")
    g(f"v_permlane32_swap_b32 {v(val)}, {v(tmp)}")
    g("s_nop 1")
    g(f"v_add_f32 {v(val)}, {v(val)}, {v(tmp)}")

S_STAMP = 84
def stamp(i):
    if not STAMP: return
    g(f"s_memrealtime {s(S_T+14,2)}")
    g("s_waitcnt lgkmcnt(0)")
    g(f"s_mov_b32 {s(S_STAMP+i)}, {s(S_T+14)}")
def stamp_flush(n):
    if not STAMP: return
    g(f"s_lshl_b32 {s(S_T)}, {s(S_WG)}, 3")
    g(f"s_add_u32 {s(S_T)}, {s(S_T)}, {s(S_W)}")
    g(f"s_lshl_b32 {s(S_T)}, {s(S_T)}, 5")
    g(f"s_add_u32 {s(S_T)}, {s(S_T)}, 0x800000")
    g("s_mov_b64 exec, 1")
    g(f"v_mov_b32 {v(V_T+1)}, 0")
    for i in range(n):
        g(f"v_mov_b32 {v(V_T)}, {s(S_STAMP+i)}")
        g(f"buffer_store_dword {v(V_T)}, {v(V_T+1)}, {s(SRD_WS,4)}, {s(S_T)} offen offset:{i*4}")
    g("s_waitcnt vmcnt(0)")
    g("s_mov_b64 exec, -1")

def end_kernel():
    g("s_endpgm")

def prologue():
    g(f"s_load_dwordx16 {s(S_PTR,16)}, s[0:1], 0")
    g(f"s_cmp_ge_u32 {s(S_WG)}, {NWG}")
    g("s_cbranch_scc1 L_END")
    g(f"s_lshr_b32 {s(S_B)}, {s(S_WG)}, 5")
    g(f"s_lshr_b32 {s(S_HKV)}, {s(S_WG)}, 2")
    g(f"s_and_b32 {s(S_HKV)}, {s(S_HKV)}, 7")
    g(f"s_and_b32 {s(S_SP)}, {s(S_WG)}, 3")
    g(f"v_and_b32 {v(V_L)}, 63, {v(V_TID)}")
    g(f"v_lshrrev_b32 {v(V_T)}, 6, {v(V_TID)}")
    g("s_nop 0")
    g(f"v_readfirstlane_b32 {s(S_W)}, {v(V_T)}")
    g(f"s_lshl_b32 {s(S_RING)}, {s(S_W)}, 14")
    g(f"s_lshl_b32 {s(S_T)}, {s(S_B)}, 3")
    g(f"s_add_u32 {s(S_T)}, {s(S_T)}, {s(S_HKV)}")
    g(f"s_lshl_b32 {s(S_T)}, {s(S_T)}, 20")
    g(f"s_lshl_b32 {s(S_T+1)}, {s(S_SP)}, 18")
    g(f"s_add_u32 {s(S_KVB)}, {s(S_T)}, {s(S_T+1)}")
    g(f"s_mul_i32 {s(S_PB)}, {s(S_WG)}, {PB_SZ}")
    g(f"s_add_u32 {s(S_PB)}, {s(S_PB)}, {WS_PB:#x}")
    g(f"s_mov_b32 {s(S_C)}, {f2u(SOFTMAX_C):#x}")
    g(f"s_mov_b32 {s(S_NC)}, {f2u(-SOFTMAX_C):#x}")
    g(f"s_mov_b32 {s(S_SELLO)}, 0x05040100")
    g(f"s_mov_b32 {s(S_SELHI)}, 0x07060302")
    g("s_waitcnt lgkmcnt(0)")
    srd(SRD_X, S_PTR + 0, X_BYTES)
    srd(SRD_K, S_PTR + 2, KV_BYTES)
    srd(SRD_V, S_PTR + 4, KV_BYTES)
    srd(SRD_WQ, S_PTR + 6, WQ_BYTES)
    srd(SRD_WO, S_PTR + 8, WO_BYTES)
    srd(SRD_OUT, S_PTR + 10, OUT_BYTES)
    srd(SRD_DBG, S_PTR + 12, 256)
    srd(SRD_WS, S_PTR + 14, WS_BYTES)
    r, gq = V_T + 0, V_T + 1
    g(f"v_and_b32 {v(r)}, 15, {v(V_L)}")
    g(f"v_lshrrev_b32 {v(gq)}, 4, {v(V_L)}")
    for a in range(4):
        g(f"v_lshlrev_b32 {v(V_T+2)}, 2, {v(gq)}")
        g(f"v_add_u32 {v(V_T+2)}, {a}, {v(V_T+2)}")
        g(f"v_xor_b32 {v(V_T+2)}, {v(V_T+2)}, {v(r)}")
        g(f"v_lshlrev_b32 {v(V_T+2)}, 4, {v(V_T+2)}")
        g(f"v_lshl_add_u32 {v(V_KSRC+a)}, {v(gq)}, 8, {v(V_T+2)}")
    g(f"v_and_b32 {v(V_T+2)}, 3, {v(r)}")
    g(f"v_lshlrev_b32 {v(V_T+2)}, 2, {v(V_T+2)}")
    g(f"v_lshrrev_b32 {v(V_T+3)}, 2, {v(r)}")
    g(f"v_add_u32 {v(V_T+2)}, {v(V_T+2)}, {v(V_T+3)}")
    g(f"v_lshlrev_b32 {v(V_T+2)}, 8, {v(V_T+2)}")
    g(f"v_add_u32 {v(V_T+2)}, {s(S_RING)}, {v(V_T+2)}")
    for t in range(4):
        g(f"v_add_u32 {v(V_T+3)}, {4*t}, {v(gq)}")
        g(f"v_xor_b32 {v(V_T+3)}, {v(V_T+3)}, {v(r)}")
        g(f"v_lshl_add_u32 {v(V_KRD+t)}, {v(V_T+3)}, 4, {v(V_T+2)}")
    g(f"v_lshlrev_b32 {v(V_VOFF)}, 4, {v(V_L)}")

def issue_K(it):
    sl = it & 1
    g(f"s_lshl_b32 {s(S_T)}, {s(S_W)}, 13")
    g(f"s_add_u32 {s(S_T)}, {s(S_T)}, {s(S_KVB)}")
    if it:
        g(f"s_add_u32 {s(S_T)}, {s(S_T)}, {it*8*8192:#x}")
    g(f"s_add_u32 {s(S_T+1)}, {s(S_T)}, 4096")
    g(f"s_add_u32 m0, {s(S_RING)}, {sl*8192}")
    g("s_nop 0")
    for a in range(4):
        g.vmem(f"buffer_load_dwordx4 {v(V_KSRC+a)}, {s(SRD_K,4)}, {s(S_T)} offen offset:{a*1024} nt lds", f"K{it}")
    g(f"s_add_u32 m0, {s(S_RING)}, {sl*8192+4096}")
    g("s_nop 0")
    for a in range(4):
        g.vmem(f"buffer_load_dwordx4 {v(V_KSRC+a)}, {s(SRD_K,4)}, {s(S_T+1)} offen offset:{a*1024} nt lds", f"K{it}")

def vin(it):
    return V_VIN if it % 2 == 0 else V_WRAW

def issue_V(it):
    g.cmt(f"V block {it} -> registers")
    g(f"s_lshl_b32 {s(S_T)}, {s(S_W)}, 13")
    g(f"s_add_u32 {s(S_T)}, {s(S_T)}, {s(S_KVB)}")
    if it:
        g(f"s_add_u32 {s(S_T)}, {s(S_T)}, {it*8*8192:#x}")
    g(f"s_add_u32 {s(S_T+1)}, {s(S_T)}, 4096")
    for j in range(8):
        g.vmem(f"buffer_load_dwordx4 {v(vin(it)+4*j,4)}, {v(V_VOFF)}, {s(SRD_V,4)}, {s(S_T + (j>>2))} offen offset:{(j&3)*1024} nt", f"V{it}")

def issue_WO():
    g.cmt("wo slice -> registers (used in T4)")
    g(f"v_lshrrev_b32 {v(V_T)}, 4, {v(V_L)}")
    g(f"v_lshlrev_b32 {v(V_T)}, 15, {v(V_T)}")
    g(f"v_and_b32 {v(V_T+1)}, 15, {v(V_L)}")
    g(f"v_lshl_add_u32 {v(V_T)}, {v(V_T+1)}, 4, {v(V_T)}")
    g(f"s_lshl_b32 {s(S_T)}, {s(S_HKV)}, 9")
    g(f"s_lshr_b32 {s(S_T+1)}, {s(S_W)}, 1")
    g(f"s_lshl_b32 {s(S_T+1)}, {s(S_T+1)}, 7")
    g(f"s_add_u32 {s(S_T)}, {s(S_T)}, {s(S_T+1)}")
    g(f"s_and_b32 {s(S_T+1)}, {s(S_W)}, 1")
    g(f"s_lshl_b32 {s(S_T+1)}, {s(S_T+1)}, 2")
    g(f"s_add_u32 {s(S_T)}, {s(S_T)}, {s(S_T+1)}")
    g(f"s_lshl_b32 {s(S_T)}, {s(S_T)}, 10")
    g(f"s_lshl_b32 {s(S_T+1)}, {s(S_SP)}, 8")
    g(f"s_add_u32 {s(S_T)}, {s(S_T)}, {s(S_T+1)}")
    for u in range(2):
        for j in range(8):
            row = 8 * (j & 3) + 2 * u + (j >> 2)
            g(f"s_add_u32 {s(S_T+2)}, {s(S_T)}, {row*1024:#x}")
            if WOPOL == "skip":
                continue
            g.vmem(f"buffer_load_dwordx4 {v(V_WRAW + (u*8+j)*4, 4)}, {v(V_T)}, {s(SRD_WO,4)}, {s(S_T+2)} offen {WOPOL}", "WO")

def prefetch():
    issue_K(0); issue_V(0); issue_K(1); issue_WO()

QA, QB, QD = V_O, V_O + 16, V_O + 24
def head_issue_loads():
    g.cmt("---- head: q[:, C:C+16] = x @ wq[:, C:C+16],  C = hkv*512 + (sp*8+b)*16 ; wave w takes k in [64w, 64w+64)")
    g(f"v_and_b32 {v(V_T)}, 15, {v(V_L)}")
    g(f"v_lshrrev_b32 {v(V_T+1)}, 4, {v(V_L)}")
    g(f"v_lshlrev_b32 {v(V_T+2)}, 10, {v(V_T)}")
    g(f"v_lshl_add_u32 {v(V_T+2)}, {v(V_T+1)}, 4, {v(V_T+2)}")
    g(f"s_lshl_b32 {s(S_T)}, {s(S_W)}, 7")
    for mt in range(2):
        for u in range(2):
            g(f"s_add_u32 {s(S_T+1)}, {s(S_T)}, {mt*16384 + u*64}")
            g.vmem(f"buffer_load_dwordx4 {v(QA + (mt*2+u)*4, 4)}, {v(V_T+2)}, {s(SRD_X,4)}, {s(S_T+1)} offen", "XQ")
    g(f"v_lshlrev_b32 {v(V_T+3)}, 16, {v(V_T+1)}")
    g(f"v_lshl_add_u32 {v(V_T+3)}, {v(V_T)}, 1, {v(V_T+3)}")
    g(f"s_lshl_b32 {s(S_T+2)}, {s(S_SP)}, 3")
    g(f"s_add_u32 {s(S_T+2)}, {s(S_T+2)}, {s(S_B)}")
    g(f"s_lshl_b32 {s(S_T+2)}, {s(S_T+2)}, 5")
    g(f"s_lshl_b32 {s(S_T+3)}, {s(S_HKV)}, 10")
    g(f"s_add_u32 {s(S_T+2)}, {s(S_T+2)}, {s(S_T+3)}")
    g(f"s_lshl_b32 {s(S_T+3)}, {s(S_W)}, 19")
    g(f"s_add_u32 {s(S_T+3)}, {s(S_T+3)}, {s(S_T+2)}")
    for u in range(2):
        for j in range(8):
            g(f"s_add_u32 {s(S_T+4)}, {s(S_T+3)}, {(32*u+j)*8192:#x}")
            g.vmem(f"buffer_load_ushort {v(V_KOP + u*8 + j)}, {v(V_T+3)}, {s(SRD_WQ,4)}, {s(S_T+4)} offen", "XQ")

def head_mfma_and_stage():
    g.wait_vm("XQ")
    for p in range(8):
        g(f"v_lshl_or_b32 {v(QB + p)}, {v(V_KOP + 2*p + 1)}, 16, {v(V_KOP + 2*p)}")
    g("s_nop 1")
    for mt in range(2):
        g(f"v_mfma_f32_16x16x32_bf16 {v(QD+4*mt,4)}, {v(QA+(mt*2)*4,4)}, {v(QB,4)}, 0")
        g(f"v_mfma_f32_16x16x32_bf16 {v(QD+4*mt,4)}, {v(QA+(mt*2+1)*4,4)}, {v(QB+4,4)}, {v(QD+4*mt,4)}")
    g(f"s_lshl_b32 {s(S_T+5)}, {s(S_W)}, 11")
    g(f"s_add_u32 {s(S_T+5)}, {s(S_T+5)}, {L_HBUF}")
    g(f"v_lshl_add_u32 {v(V_T+4)}, {v(V_L)}, 4, {s(S_T+5)}")
    g("s_nop 7")
    g("s_nop 1")
    for mt in range(2):
        g(f"ds_write_b128 {v(V_T+4)}, {v(QD+4*mt,4)} offset:{mt*1024}")
    g("s_waitcnt lgkmcnt(0)")
    g("s_barrier")

def head_publish():
    R = V_KOP
    g(f"s_lshl_b32 {s(S_T+5)}, {s(S_W)}, 10")
    g(f"s_add_u32 {s(S_T+5)}, {s(S_T+5)}, {L_HBUF}")
    g(f"v_lshl_add_u32 {v(V_T+4)}, {v(V_L)}, 4, {s(S_T+5)}")
    for src in range(8):
        g(f"ds_read_b128 {v(R+4*src,4)}, {v(V_T+4)} offset:{src*2048}")
    g("s_waitcnt lgkmcnt(0)")
    for src in range(1, 8):
        for i in range(4):
            g(f"v_add_f32 {v(R+i)}, {v(R+i)}, {v(R+4*src+i)}")
    g(f"v_cvt_pk_bf16_f32 {v(R+4)}, {v(R+0)}, {v(R+1)}")
    g(f"v_cvt_pk_bf16_f32 {v(R+5)}, {v(R+2)}, {v(R+3)}")
    g(f"v_and_b32 {v(V_T)}, 15, {v(V_L)}")
    g(f"v_lshrrev_b32 {v(V_T+1)}, 4, {v(V_L)}")
    g(f"v_lshlrev_b32 {v(V_T+2)}, 15, {v(V_T+1)}")
    g(f"v_lshl_add_u32 {v(V_T+2)}, {v(V_T)}, 1, {v(V_T+2)}")
    g(f"s_lshl_b32 {s(S_T+5)}, {s(S_W)}, 17")
    g(f"s_add_u32 {s(S_T+5)}, {s(S_T+5)}, {s(S_T+2)}")
    g(f"s_add_u32 {s(S_T+5)}, {s(S_T+5)}, {WS_Q}")
    for i in range(4):
        g(f"s_add_u32 {s(S_T+6)}, {s(S_T+5)}, {i*8192}")
        op = "buffer_store_short" if i % 2 == 0 else "buffer_store_short_d16_hi"
        g.vmem(f"{op} {v(R+4+i//2)}, {v(V_T+2)}, {s(SRD_WS,4)}, {s(S_T+6)} offen sc1", "QST")
    for i in range(4):
        g(f"v_mov_b32 {v(R+8+i)}, -1")
    g(f"v_lshlrev_b32 {v(V_T+3)}, 4, {v(V_L)}")
    g(f"s_mul_i32 {s(S_T+5)}, {s(S_W)}, 6144")
    g(f"s_add_u32 {s(S_T+5)}, {s(S_T+5)}, {s(S_PB)}")
    g(f"s_add_u32 {s(S_T+6)}, {s(S_T+5)}, 4096")
    for i in range(6):
        so = S_T + 5 if i < 4 else S_T + 6
        g.vmem(f"buffer_store_dwordx4 {v(R+8,4)}, {v(V_T+3)}, {s(SRD_WS,4)}, {s(so)} offen offset:{(i&3)*1024} sc1", "QST")
    g.wait_vm0()
    g(f"s_and_b32 {s(S_T+5)}, {s(S_WG)}, 63")
    g(f"s_lshl_b32 {s(S_T+5)}, {s(S_T+5)}, 2")
    g(f"v_mov_b32 {v(V_T)}, 1")
    g(f"v_mov_b32 {v(V_T+1)}, {s(S_T+5)}")
    g(f"s_mov_b64 {s(S_EXS,2)}, exec")
    g("s_mov_b64 exec, 1")
    g.vmem(f"buffer_atomic_add {v(V_T)}, {v(V_T+1)}, {s(SRD_DBG,4)}, 0 offen sc1", "ATOM")
    g(f"s_mov_b64 exec, {s(S_EXS,2)}")
    g.wait_vm0()

def head_poll_and_stage_q():
    g.cmt("wave 0: poll the 64 arrival counters, then stage this wg's Q operand in LDS")
    g(f"s_mov_b32 {s(S_CNT)}, 0")
    g(f"v_lshlrev_b32 {v(V_T+1)}, 2, {v(V_L)}")
    g.lab("L_POLL")
    g(f"buffer_load_dword {v(V_T)}, {v(V_T+1)}, {s(SRD_DBG,4)}, 0 offen sc1")
    g("s_waitcnt vmcnt(0)")
    g(f"v_cmp_ne_u32 vcc, 8, {v(V_T)}")
    g("s_cbranch_vccz L_POLL_DONE")
    g(f"s_add_u32 {s(S_CNT)}, {s(S_CNT)}, 1")
    g(f"s_cmp_lt_u32 {s(S_CNT)}, 0x8000")
    g("s_cbranch_scc0 L_POLL_DONE")
    g("s_sleep 2")
    g("s_branch L_POLL")
    g.lab("L_POLL_DONE")
    stamp(3)
    g(f"v_and_b32 {v(V_T)}, 3, {v(V_L)}")
    g(f"v_lshlrev_b32 {v(V_T)}, 13, {v(V_T)}")
    g(f"v_and_b32 {v(V_T+1)}, 15, {v(V_L)}")
    g(f"v_lshrrev_b32 {v(V_T+1)}, 2, {v(V_T+1)}")
    g(f"v_lshl_add_u32 {v(V_T)}, {v(V_T+1)}, 8, {v(V_T)}")
    g(f"v_lshrrev_b32 {v(V_T+1)}, 4, {v(V_L)}")
    g(f"v_lshl_add_u32 {v(V_T)}, {v(V_T+1)}, 4, {v(V_T)}")
    g(f"s_lshl_b32 {s(S_T+5)}, {s(S_B)}, 15")
    g(f"s_lshl_b32 {s(S_T+6)}, {s(S_HKV)}, 10")
    g(f"s_add_u32 {s(S_T+5)}, {s(S_T+5)}, {s(S_T+6)}")
    g(f"s_add_u32 {s(S_T+5)}, {s(S_T+5)}, {WS_Q}")
    for t in range(4):
        g(f"buffer_load_dwordx4 {v(V_KOP+4*t,4)}, {v(V_T)}, {s(SRD_WS,4)}, {s(S_T+5)} offen offset:{t*64} sc1")
    g("s_waitcnt vmcnt(0)")
    g(f"v_lshlrev_b32 {v(V_T+1)}, 4, {v(V_L)}")
    g(f"v_add_u32 {v(V_T+1)}, {L_QBUF}, {v(V_T+1)}")
    for t in range(4):
        g(f"ds_write_b128 {v(V_T+1)}, {v(V_KOP+4*t,4)} offset:{t*1024}")
    g("s_waitcnt lgkmcnt(0)")

def head_clear_and_tag():
    g(f"s_cmp_ge_u32 {s(S_W)}, 2")
    g("s_cbranch_scc1 L_NOCLR")
    R = V_X
    for i in range(4):
        g(f"v_mov_b32 {v(R+i)}, -1")
    g(f"v_lshlrev_b32 {v(V_T+3)}, 4, {v(V_L)}")
    g(f"s_mul_i32 {s(S_T+5)}, {s(S_W)}, 6144")
    g(f"s_add_u32 {s(S_T+5)}, {s(S_T+5)}, {s(S_PB)}")
    g(f"s_add_u32 {s(S_T+6)}, {s(S_T+5)}, 4096")
    for i in range(6):
        so = S_T + 5 if i < 4 else S_T + 6
        g(f"buffer_store_dwordx4 {v(R,4)}, {v(V_T+3)}, {s(SRD_WS,4)}, {s(so)} offen offset:{(i&3)*1024} sc1")
    g("s_waitcnt vmcnt(0)")
    g(f"s_and_b32 {s(S_T+5)}, {s(S_WG)}, 63")
    g(f"s_lshl_b32 {s(S_T+5)}, {s(S_T+5)}, 2")
    g(f"v_mov_b32 {v(V_T)}, 1")
    g(f"v_mov_b32 {v(V_T+1)}, {s(S_T+5)}")
    g(f"s_mov_b64 {s(S_EXS,2)}, exec")
    g("s_mov_b64 exec, 1")
    g(f"buffer_atomic_add {v(V_T)}, {v(V_T+1)}, {s(SRD_DBG,4)}, 0 offen sc1")
    g(f"s_mov_b64 exec, {s(S_EXS,2)}")
    g("s_waitcnt vmcnt(0)")
    g.lab("L_NOCLR")
    g.vm = []

HQ_WA, HQ_WB = V_KOP, V_X
HQ_XF = V_Q
HQ_TB = V_S
HQ_D = V_O
V_WQOFF, V_XOFF = V_T + 8, V_T + 9

def hq_issue_round(rnd):
    buf = HQ_WA if rnd % 2 == 0 else HQ_WB
    g(f"s_add_u32 {s(S_T+10)}, {s(S_T+8)}, {rnd*64}")
    g.vmem(f"buffer_load_dwordx4 {v(HQ_XF + 4*(rnd%2), 4)}, {v(V_XOFF)}, {s(SRD_X,4)}, {s(S_T+10)} offen", f"R{rnd}")
    for j in range(8):
        g(f"s_add_u32 {s(S_T+10)}, {s(S_T+9)}, {(32*rnd + j)*8192:#x}")
        g.vmem(f"buffer_load_dwordx4 {v(buf + 4*j, 4)}, {v(V_WQOFF)}, {s(SRD_WQ,4)}, {s(S_T+10)} offen", f"R{rnd}")

def hq_compute_round(rnd):
    buf = HQ_WA if rnd % 2 == 0 else HQ_WB
    g.wait_vm(f"R{rnd}")
    for tc in range(8):
        tb = HQ_TB + 4 * (tc % 2)
        sel = S_SELLO if tc % 2 == 0 else S_SELHI
        for p_ in range(4):
            g(f"v_perm_b32 {v(tb+p_)}, {v(buf+(2*p_+1)*4+(tc>>1))}, {v(buf+(2*p_)*4+(tc>>1))}, {s(sel)}")
        g("s_nop 1")
        c = "0" if rnd == 0 else v(HQ_D + 4*tc, 4)
        g(f"v_mfma_f32_16x16x32_bf16 {v(HQ_D+4*tc,4)}, {v(HQ_XF+4*(rnd%2),4)}, {v(tb,4)}, {c}")

def head():
    head_clear_and_tag()
    g(f"v_lshrrev_b32 {v(V_T)}, 4, {v(V_L)}")
    g(f"v_and_b32 {v(V_T+1)}, 15, {v(V_L)}")
    g(f"v_lshlrev_b32 {v(V_WQOFF)}, 16, {v(V_T)}")
    g(f"v_lshl_add_u32 {v(V_WQOFF)}, {v(V_T+1)}, 4, {v(V_WQOFF)}")
    g(f"v_and_b32 {v(V_T+1)}, 3, {v(V_L)}")
    g(f"v_lshlrev_b32 {v(V_XOFF)}, 10, {v(V_T+1)}")
    g(f"v_lshl_add_u32 {v(V_XOFF)}, {v(V_T)}, 4, {v(V_XOFF)}")
    g(f"s_and_b32 {s(S_T)}, {s(S_W)}, 1")
    g(f"s_lshl_b32 {s(S_T+8)}, {s(S_B)}, 12")
    g(f"s_lshl_b32 {s(S_T+1)}, {s(S_T)}, 9")
    g(f"s_add_u32 {s(S_T+8)}, {s(S_T+8)}, {s(S_T+1)}")
    g(f"s_lshl_b32 {s(S_T+9)}, {s(S_T)}, 21")
    g(f"s_lshl_b32 {s(S_T+1)}, {s(S_HKV)}, 10")
    g(f"s_add_u32 {s(S_T+9)}, {s(S_T+9)}, {s(S_T+1)}")
    g(f"s_lshr_b32 {s(S_T+1)}, {s(S_W)}, 1")
    g(f"s_lshl_b32 {s(S_T+1)}, {s(S_T+1)}, 8")
    g(f"s_add_u32 {s(S_T+9)}, {s(S_T+9)}, {s(S_T+1)}")
    hq_issue_round(0)
    hq_issue_round(1)
    issue_K(0); issue_V(0)
    for rnd in range(8):
        hq_compute_round(rnd)
        if rnd + 2 < 8:
            g("s_nop 4")
            hq_issue_round(rnd + 2)
        if rnd == 2:
            issue_K(1)
        if rnd == 4:
            issue_WO()
    g(f"s_lshl_b32 {s(S_T)}, {s(S_W)}, 11")
    g(f"s_and_b32 {s(S_T+1)}, {s(S_W)}, 1")
    g(f"s_lshl_b32 {s(S_T+1)}, {s(S_T+1)}, 13")
    g(f"s_lshr_b32 {s(S_T+2)}, {s(S_W)}, 1")
    g(f"s_lshl_b32 {s(S_T+2)}, {s(S_T+2)}, 11")
    g(f"s_add_u32 {s(S_T)}, {s(S_T+1)}, {s(S_T+2)}")
    g(f"s_add_u32 {s(S_T)}, {s(S_T)}, {L_HBUF}")
    g(f"v_lshl_add_u32 {v(V_T)}, {v(V_L)}, 5, {s(S_T)}")
    g("s_nop 7")
    g("s_nop 1")
    g(f"s_mov_b64 {s(S_EXS,2)}, exec")
    g("s_mov_b64 exec, 0xffff")
    for tc in range(8):
        for i in range(4):
            g(f"ds_write_b32 {v(V_T)}, {v(HQ_D+4*tc+i)} offset:{i*512 + tc*4}")
    g(f"s_mov_b64 exec, {s(S_EXS,2)}")
    g("s_waitcnt lgkmcnt(0)")
    g("s_barrier")
    g(f"v_and_b32 {v(V_T)}, 15, {v(V_L)}")
    g(f"v_lshrrev_b32 {v(V_T+1)}, 2, {v(V_T)}")
    g(f"v_lshlrev_b32 {v(V_T+1)}, 11, {v(V_T+1)}")
    g(f"v_and_b32 {v(V_T)}, 3, {v(V_T)}")
    g(f"v_lshl_add_u32 {v(V_T+1)}, {v(V_T)}, 9, {v(V_T+1)}")
    g(f"v_lshrrev_b32 {v(V_T)}, 4, {v(V_L)}")
    g(f"v_lshl_add_u32 {v(V_T+1)}, {v(V_T)}, 5, {v(V_T+1)}")
    g(f"v_add_u32 {v(V_T+1)}, {L_HBUF}, {v(V_T+1)}")
    QT = V_KOP
    for t in range(4):
        for kh in range(2):
            g(f"ds_read_b128 {v(QT+8*kh,4)}, {v(V_T+1)} offset:{kh*8192 + t*128}")
            g(f"ds_read_b128 {v(QT+8*kh+4,4)}, {v(V_T+1)} offset:{kh*8192 + t*128 + 16}")
        g("s_waitcnt lgkmcnt(0)")
        for i in range(8):
            g(f"v_add_f32 {v(QT+i)}, {v(QT+i)}, {v(QT+8+i)}")
        for p_ in range(4):
            g(f"v_cvt_pk_bf16_f32 {v(V_Q+4*t+p_)}, {v(QT+2*p_)}, {v(QT+2*p_+1)}")

def check_arrivals():
    g(f"s_cmp_lg_u32 {s(S_W)}, 0")
    g("s_cbranch_scc1 L_ARR_OK")
    g(f"s_mov_b32 {s(S_CNT)}, 0")
    g(f"v_lshlrev_b32 {v(V_T+6)}, 2, {v(V_L)}")
    g.lab("L_ARR")
    g(f"buffer_load_dword {v(V_T+5)}, {v(V_T+6)}, {s(SRD_DBG,4)}, 0 offen sc1")
    g("s_waitcnt vmcnt(0)")
    g(f"v_cmp_ne_u32 vcc, 8, {v(V_T+5)}")
    g("s_cbranch_vccz L_ARR_OK")
    g(f"s_add_u32 {s(S_CNT)}, {s(S_CNT)}, 1")
    g(f"s_cmp_lt_u32 {s(S_CNT)}, 0x8000")
    g("s_cbranch_scc0 L_ARR_OK")
    g("s_sleep 8")
    g("s_branch L_ARR")
    g.lab("L_ARR_OK")
    g.vm = []

def softmax_block():
    t0, t1, mn, al, nm = V_T + 0, V_T + 1, V_T + 2, V_T + 3, V_T + 4
    S = V_S
    g(f"v_max3_f32 {v(t0)}, {v(S+0)}, {v(S+1)}, {v(S+2)}")
    g(f"v_max3_f32 {v(t0)}, {v(t0)}, {v(S+3)}, {v(S+4)}")
    g(f"v_max3_f32 {v(t0)}, {v(t0)}, {v(S+5)}, {v(S+6)}")
    g(f"v_max_f32 {v(t0)}, {v(t0)}, {v(S+7)}")
    xmax_g(t0, t1)
    g(f"v_max_f32 {v(mn)}, {v(V_M)}, {v(t0)}")
    g(f"v_sub_f32 {v(al)}, {v(V_M)}, {v(mn)}")
    g(f"v_mul_f32 {v(al)}, {s(S_C)}, {v(al)}")
    g(f"v_exp_f32 {v(al)}, {v(al)}")
    g(f"v_mul_f32 {v(nm)}, {s(S_NC)}, {v(mn)}")
    for i in range(8):
        g(f"v_fma_f32 {v(S+i)}, {v(S+i)}, {s(S_C)}, {v(nm)}")
    for i in range(8):
        g(f"v_exp_f32 {v(S+i)}, {v(S+i)}")
    g(f"v_mov_b32 {v(V_M)}, {v(mn)}")
    g(f"v_mul_f32 {v(V_LS)}, {v(V_LS)}, {v(al)}")
    for i in range(8):
        g(f"v_add_f32 {v(V_LS)}, {v(V_LS)}, {v(S+i)}")
    for i in range(32):
        g(f"v_mul_f32 {v(V_O+i)}, {v(V_O+i)}, {v(al)}")
    for p_ in range(4):
        g(f"v_cvt_pk_bf16_f32 {v(V_P+p_)}, {v(S+2*p_)}, {v(S+2*p_+1)}")

def main_loop():
    g.cmt("---- main: 4 blocks of 32 keys per wave")
    g(f"v_mov_b32 {v(V_M)}, 0xff800000")
    g(f"v_mov_b32 {v(V_LS)}, 0")
    for i in range(32):
        g(f"v_mov_b32 {v(V_O+i)}, 0")
    for it in range(4):
        sl = it & 1
        if it >= 1 and LOCK:
            g("s_barrier")
        g.wait_vm(f"K{it}")
        for T in range(2):
            for t in range(4):
                g(f"ds_read_b128 {v(V_KOP + (T*4+t)*4, 4)}, {v(V_KRD+t)} offset:{sl*8192 + T*4096}")
        g("s_waitcnt lgkmcnt(0)")
        if it + 2 < 4:
            issue_K(it + 2)
        for T in range(2):
            for t in range(4):
                c = "0" if t == 0 else v(V_S + 4*T, 4)
                g(f"v_mfma_f32_16x16x32_bf16 {v(V_S+4*T,4)}, {v(V_KOP+(T*4+t)*4,4)}, {v(V_Q+4*t,4)}, {c}")
        g("s_nop 7")
        g("s_nop 1")
        softmax_block()
        g.wait_vm(f"V{it}")
        for t in range(8):
            for p_ in range(4):
                sel = S_SELLO if t % 2 == 0 else S_SELHI
                g(f"v_perm_b32 {v(V_KOP+4*t+p_)}, {v(vin(it)+(2*p_+1)*4+(t>>1))}, {v(vin(it)+(2*p_)*4+(t>>1))}, {s(sel)}")
        if it + 2 < 4:
            issue_V(it + 2)
        g("s_nop 1")
        for t in range(8):
            g(f"v_mfma_f32_16x16x32_bf16 {v(V_O+4*t,4)}, {v(V_KOP+4*t,4)}, {v(V_P,4)}, {v(V_O+4*t,4)}")

def t1_combine_publish():
    g.cmt("---- T1: in-workgroup combine through LDS")
    g(f"s_lshl_b32 {s(S_T)}, {s(S_W)}, 9")
    g(f"s_add_u32 {s(S_T)}, {s(S_T)}, {L_ML}")
    g(f"v_lshl_add_u32 {v(V_T)}, {v(V_L)}, 3, {s(S_T)}")
    g(f"ds_write_b64 {v(V_T)}, {v(V_M,2)}")
    g(f"v_lshl_add_u32 {v(V_T+1)}, {v(V_L)}, 4, {s(S_RING)}")
    g("s_nop 7")
    g("s_nop 1")
    for t in range(8):
        g(f"ds_write_b128 {v(V_T+1)}, {v(V_O+4*t,4)} offset:{t*1024}")
    g("s_waitcnt lgkmcnt(0)")
    g("s_barrier")
    ML, OB, F = V_KOP, V_VIN, V_X
    g(f"v_lshlrev_b32 {v(V_T)}, 3, {v(V_L)}")
    g(f"v_add_u32 {v(V_T)}, {L_ML}, {v(V_T)}")
    for w2 in range(8):
        g(f"ds_read_b64 {v(ML+2*w2,2)}, {v(V_T)} offset:{w2*512}")
    g(f"s_lshl_b32 {s(S_T)}, {s(S_W)}, 10")
    g(f"v_lshl_add_u32 {v(V_T+1)}, {v(V_L)}, 4, {s(S_T)}")
    g(f"v_add_u32 {v(V_T+2)}, 0x10000, {v(V_T+1)}")
    for w2 in range(8):
        a = V_T + 1 if w2 < 4 else V_T + 2
        g(f"ds_read_b128 {v(OB+4*w2,4)}, {v(a)} offset:{(w2&3)*16384}")
    g("s_waitcnt lgkmcnt(0)")
    Mx, Lp, tmp = V_T + 3, V_T + 4, V_T + 5
    g(f"v_max3_f32 {v(Mx)}, {v(ML+0)}, {v(ML+2)}, {v(ML+4)}")
    g(f"v_max3_f32 {v(Mx)}, {v(Mx)}, {v(ML+6)}, {v(ML+8)}")
    g(f"v_max3_f32 {v(Mx)}, {v(Mx)}, {v(ML+10)}, {v(ML+12)}")
    g(f"v_max_f32 {v(Mx)}, {v(Mx)}, {v(ML+14)}")
    for w2 in range(8):
        g(f"v_sub_f32 {v(F+w2)}, {v(ML+2*w2)}, {v(Mx)}")
        g(f"v_mul_f32 {v(F+w2)}, {s(S_C)}, {v(F+w2)}")
        g(f"v_exp_f32 {v(F+w2)}, {v(F+w2)}")
    g("s_nop 0")
    g(f"v_mul_f32 {v(Lp)}, {v(F+0)}, {v(ML+1)}")
    for w2 in range(1, 8):
        g(f"v_fma_f32 {v(Lp)}, {v(F+w2)}, {v(ML+2*w2+1)}, {v(Lp)}")
    xsum_g(Lp, tmp)
    OO = V_X + 8
    for i in range(4):
        g(f"v_mul_f32 {v(OO+i)}, {v(F+0)}, {v(OB+i)}")
    for w2 in range(1, 8):
        for i in range(4):
            g(f"v_fma_f32 {v(OO+i)}, {v(F+w2)}, {v(OB+4*w2+i)}, {v(OO+i)}")
    for i in range(4):
        g(f"v_min_u32 {v(OO+i)}, -2, {v(OO+i)}")
    g(f"s_lshl_b32 {s(S_T)}, {s(S_W)}, 10")
    g(f"s_add_u32 {s(S_T)}, {s(S_T)}, {s(S_PB)}")
    g.vmem(f"buffer_store_dwordx4 {v(OO,4)}, {v(V_VOFF)}, {s(SRD_WS,4)}, {s(S_T)} offen sc1", "PUB")
    g(f"s_cmp_lg_u32 {s(S_W)}, 0")
    g("s_cbranch_scc1 L_T1_NOSTAT")
    g(f"v_min_u32 {v(OO+4)}, -2, {v(Mx)}")
    g(f"v_min_u32 {v(OO+5)}, -2, {v(Lp)}")
    g(f"v_lshlrev_b32 {v(V_T)}, 3, {v(V_L)}")
    g(f"s_add_u32 {s(S_T)}, {s(S_PB)}, {PB_ML}")
    g(f"s_mov_b64 {s(S_EXS,2)}, exec")
    g("s_mov_b64 exec, 0xffff")
    g(f"buffer_store_dwordx2 {v(OO+4,2)}, {v(V_T)}, {s(SRD_WS,4)}, {s(S_T)} offen sc1")
    g(f"s_mov_b64 exec, {s(S_EXS,2)}")
    g.lab("L_T1_NOSTAT")
    g.vm.append("PUB")

def umax_chain(regs, dst):
    regs = list(regs)
    g(f"v_max3_u32 {v(dst)}, {v(regs[0])}, {v(regs[1])}, {v(regs[2])}")
    i = 3
    while i < len(regs):
        if i + 1 < len(regs):
            g(f"v_max3_u32 {v(dst)}, {v(dst)}, {v(regs[i])}, {v(regs[i+1])}"); i += 2
        else:
            g(f"v_max_u32 {v(dst)}, {v(dst)}, {v(regs[i])}"); i += 1

def poll_tail(name, issue_loads, regs, tmp):
    g(f"s_mov_b32 {s(S_CNT)}, 0")
    g.lab(f"L_{name}_RETRY")
    issue_loads()
    g("s_waitcnt vmcnt(0)")
    umax_chain(regs, tmp)
    g(f"v_cmp_eq_u32 vcc, -1, {v(tmp)}")
    g(f"s_cbranch_vccz L_{name}_OK")
    g(f"s_add_u32 {s(S_CNT)}, {s(S_CNT)}, 1")
    g(f"s_cmp_lt_u32 {s(S_CNT)}, 0x8000")
    g(f"s_cbranch_scc0 L_{name}_OK")
    g(f"s_sleep {SLEEP}")
    g(f"s_branch L_{name}_RETRY")
    g.lab(f"L_{name}_OK")
    g.vm = []

def t3_t4():
    g.cmt("---- T3: gather the 4 split partials of (b,hkv); wave = (hq = w>>1, th = w&1)")
    DD = [V_VIN, V_VIN + 16, V_KOP, V_KOP + 16]
    ST = V_X
    g(f"v_lshrrev_b32 {v(V_T)}, 4, {v(V_L)}")
    g(f"v_and_b32 {v(V_T+1)}, 3, {v(V_L)}")
    g(f"v_lshl_add_u32 {v(V_T)}, {v(V_T)}, 4, {v(V_T+1)}")
    g(f"v_lshlrev_b32 {v(V_T)}, 4, {v(V_T)}")
    g(f"v_lshlrev_b32 {v(V_T+1)}, 3, {v(V_T+1)}")
    g(f"s_and_b32 {s(S_T)}, {s(S_WG)}, 0xfc")
    g(f"s_mul_i32 {s(S_T)}, {s(S_T)}, {PB_SZ}")
    g(f"s_add_u32 {s(S_T)}, {s(S_T)}, {WS_PB:#x}")
    g(f"s_lshr_b32 {s(S_T+1)}, {s(S_W)}, 1")
    g(f"s_and_b32 {s(S_T+2)}, {s(S_W)}, 1")
    g(f"s_lshl_b32 {s(S_T+3)}, {s(S_T+1)}, 6")
    g(f"s_lshl_b32 {s(S_T+4)}, {s(S_T+2)}, 12")
    g(f"s_add_u32 {s(S_T+3)}, {s(S_T+3)}, {s(S_T+4)}")
    g(f"s_lshl_b32 {s(S_T+4)}, {s(S_T+1)}, 5")
    g(f"s_add_u32 {s(S_T+4)}, {s(S_T+4)}, {PB_ML}")
    for sp2 in range(4):
        g(f"s_add_u32 {s(S_T+8+sp2)}, {s(S_T)}, {sp2*PB_SZ}")
        g(f"s_add_u32 {s(S_T+12+sp2)}, {s(S_T+8+sp2)}, {s(S_T+4)}")
        g(f"s_add_u32 {s(S_T+8+sp2)}, {s(S_T+8+sp2)}, {s(S_T+3)}")
    def loads():
        for sp2 in range(4):
            for tt in range(4):
                g(f"buffer_load_dwordx4 {v(DD[sp2]+4*tt,4)}, {v(V_T)}, {s(SRD_WS,4)}, {s(S_T+8+sp2)} offen offset:{tt*1024} sc1")
            g(f"buffer_load_dwordx2 {v(ST+2*sp2,2)}, {v(V_T+1)}, {s(SRD_WS,4)}, {s(S_T+12+sp2)} offen sc1")
    regs = [DD[sp2] + k for sp2 in range(4) for k in range(16)] + [ST + k for k in range(8)]
    poll_tail("T3", loads, regs, V_T + 2)
    stamp(6)
    Mx, den, E = V_T + 2, V_T + 3, V_X + 8
    g(f"v_max3_f32 {v(Mx)}, {v(ST+0)}, {v(ST+2)}, {v(ST+4)}")
    g(f"v_max_f32 {v(Mx)}, {v(Mx)}, {v(ST+6)}")
    for sp2 in range(4):
        g(f"v_sub_f32 {v(E+sp2)}, {v(ST+2*sp2)}, {v(Mx)}")
        g(f"v_mul_f32 {v(E+sp2)}, {s(S_C)}, {v(E+sp2)}")
        g(f"v_exp_f32 {v(E+sp2)}, {v(E+sp2)}")
    g("s_nop 0")
    g(f"v_mul_f32 {v(den)}, {v(E+0)}, {v(ST+1)}")
    for sp2 in range(1, 4):
        g(f"v_fma_f32 {v(den)}, {v(E+sp2)}, {v(ST+2*sp2+1)}, {v(den)}")
    g(f"v_rcp_f32 {v(den)}, {v(den)}")
    g("s_nop 0")
    for sp2 in range(4):
        g(f"v_mul_f32 {v(E+sp2)}, {v(E+sp2)}, {v(den)}")
    OV = V_X + 12
    for tt in range(4):
        for i in range(4):
            g(f"v_mul_f32 {v(OV+4*tt+i)}, {v(E+0)}, {v(DD[0]+4*tt+i)}")
            for sp2 in range(1, 4):
                g(f"v_fma_f32 {v(OV+4*tt+i)}, {v(E+sp2)}, {v(DD[sp2]+4*tt+i)}, {v(OV+4*tt+i)}")
    A = V_S
    for u in range(2):
        g(f"v_cvt_pk_bf16_f32 {v(A+4*u+0)}, {v(OV+8*u+0)}, {v(OV+8*u+1)}")
        g(f"v_cvt_pk_bf16_f32 {v(A+4*u+1)}, {v(OV+8*u+2)}, {v(OV+8*u+3)}")
        g(f"v_cvt_pk_bf16_f32 {v(A+4*u+2)}, {v(OV+8*u+4)}, {v(OV+8*u+5)}")
        g(f"v_cvt_pk_bf16_f32 {v(A+4*u+3)}, {v(OV+8*u+6)}, {v(OV+8*u+7)}")
    if STOP == "t3dump":
        return
    WT = V_KOP
    for u in range(2):
        for tc in range(8):
            for p_ in range(4):
                sel = S_SELLO if tc % 2 == 0 else S_SELHI
                g(f"v_perm_b32 {v(WT+(u*8+tc)*4+p_)}, {v(V_WRAW+(u*8+2*p_+1)*4+(tc>>1))}, {v(V_WRAW+(u*8+2*p_)*4+(tc>>1))}, {s(sel)}")
    g("s_nop 1")
    DT = V_O
    for tc in range(8):
        g(f"v_mfma_f32_16x16x32_bf16 {v(DT+4*tc,4)}, {v(A,4)}, {v(WT+tc*4,4)}, 0")
        g(f"v_mfma_f32_16x16x32_bf16 {v(DT+4*tc,4)}, {v(A+4,4)}, {v(WT+(8+tc)*4,4)}, {v(DT+4*tc,4)}")
    g(f"v_lshl_add_u32 {v(V_T+1)}, {v(V_L)}, 4, {s(S_RING)}")
    g("s_nop 7")
    g("s_nop 1")
    for tc in range(8):
        g(f"ds_write_b128 {v(V_T+1)}, {v(DT+4*tc,4)} offset:{8192 + tc*1024}")
    g("s_waitcnt lgkmcnt(0)")
    g("s_barrier")
    RB = V_VIN
    g(f"s_lshl_b32 {s(S_T)}, {s(S_W)}, 10")
    g(f"s_add_u32 {s(S_T)}, {s(S_T)}, 8192")
    g(f"v_lshl_add_u32 {v(V_T+1)}, {v(V_L)}, 4, {s(S_T)}")
    g(f"v_add_u32 {v(V_T+2)}, 0x10000, {v(V_T+1)}")
    for w2 in range(8):
        a = V_T + 1 if w2 < 4 else V_T + 2
        g(f"ds_read_b128 {v(RB+4*w2,4)}, {v(a)} offset:{(w2&3)*16384}")
    g("s_waitcnt lgkmcnt(0)")
    for w2 in range(1, 8):
        for i in range(4):
            g(f"v_add_f32 {v(RB+i)}, {v(RB+i)}, {v(RB+4*w2+i)}")
    for i in range(4):
        g(f"v_min_u32 {v(RB+i)}, -2, {v(RB+i)}")
    g(f"s_lshl_b32 {s(S_T)}, {s(S_W)}, 8")
    g(f"s_add_u32 {s(S_T)}, {s(S_T)}, {s(S_PB)}")
    g(f"s_add_u32 {s(S_T)}, {s(S_T)}, {PB_OUT}")
    g(f"s_mov_b64 {s(S_EXS,2)}, exec")
    g("s_mov_b64 exec, 0xffff")
    g.vmem(f"buffer_store_dwordx4 {v(RB,4)}, {v(V_VOFF)}, {s(SRD_WS,4)}, {s(S_T)} offen sc1", "PUB2")
    g(f"s_mov_b64 exec, {s(S_EXS,2)}")

def final_reduce():
    g.cmt("---- final: wg with hkv == b sums the 8 KV-head partials of (b, sp) in fixed order, writes bf16")
    g(f"s_cmp_lg_u32 {s(S_HKV)}, {s(S_B)}")
    g("s_cbranch_scc1 L_END")
    g("s_mov_b64 exec, 0xffff")
    FB = V_VIN
    g(f"s_lshl_b32 {s(S_T)}, {s(S_B)}, 5")
    g(f"s_add_u32 {s(S_T)}, {s(S_T)}, {s(S_SP)}")
    g(f"s_mul_i32 {s(S_T)}, {s(S_T)}, {PB_SZ}")
    g(f"s_add_u32 {s(S_T)}, {s(S_T)}, {WS_PB + PB_OUT:#x}")
    g(f"s_lshl_b32 {s(S_T+1)}, {s(S_W)}, 8")
    g(f"s_add_u32 {s(S_T)}, {s(S_T)}, {s(S_T+1)}")
    for h2 in range(8):
        g(f"s_add_u32 {s(S_T+8+h2)}, {s(S_T)}, {h2*4*PB_SZ:#x}")
    def loads():
        for h2 in range(8):
            g(f"buffer_load_dwordx4 {v(FB+4*h2,4)}, {v(V_VOFF)}, {s(SRD_WS,4)}, {s(S_T+8+h2)} offen sc1")
    poll_tail("FIN", loads, [FB + k for k in range(32)], V_T + 2)
    for h2 in range(1, 8):
        for i in range(4):
            g(f"v_add_f32 {v(FB+i)}, {v(FB+i)}, {v(FB+4*h2+i)}")
    g(f"v_cvt_pk_bf16_f32 {v(FB+4)}, {v(FB+0)}, {v(FB+1)}")
    g(f"v_cvt_pk_bf16_f32 {v(FB+5)}, {v(FB+2)}, {v(FB+3)}")
    g(f"v_lshlrev_b32 {v(V_T)}, 4, {v(V_L)}")
    g(f"s_lshl_b32 {s(S_T)}, {s(S_B)}, 12")
    g(f"s_lshl_b32 {s(S_T+1)}, {s(S_SP)}, 8")
    g(f"s_add_u32 {s(S_T)}, {s(S_T)}, {s(S_T+1)}")
    g(f"s_lshl_b32 {s(S_T+1)}, {s(S_W)}, 1")
    g(f"s_add_u32 {s(S_T)}, {s(S_T)}, {s(S_T+1)}")
    for s_ in range(4):
        g(f"s_add_u32 {s(S_T+1)}, {s(S_T)}, {s_*1024}")
        op = "buffer_store_short" if s_ % 2 == 0 else "buffer_store_short_d16_hi"
        g(f"{op} {v(FB+4+s_//2)}, {v(V_T)}, {s(SRD_OUT,4)}, {s(S_T+1)} offen")
    g("s_mov_b64 exec, -1")

def k1_publish():
    R = V_KOP
    g(f"s_cmp_ge_u32 {s(S_W)}, 2")
    g("s_cbranch_scc1 L_END")
    g(f"s_lshl_b32 {s(S_T+5)}, {s(S_W)}, 10")
    g(f"s_add_u32 {s(S_T+5)}, {s(S_T+5)}, {L_HBUF}")
    g(f"v_lshl_add_u32 {v(V_T+4)}, {v(V_L)}, 4, {s(S_T+5)}")
    for src in range(8):
        g(f"ds_read_b128 {v(R+4*src,4)}, {v(V_T+4)} offset:{src*2048}")
    g("s_waitcnt lgkmcnt(0)")
    for src in range(1, 8):
        for i in range(4):
            g(f"v_add_f32 {v(R+i)}, {v(R+i)}, {v(R+4*src+i)}")
    g(f"v_cvt_pk_bf16_f32 {v(R+4)}, {v(R+0)}, {v(R+1)}")
    g(f"v_cvt_pk_bf16_f32 {v(R+5)}, {v(R+2)}, {v(R+3)}")
    g(f"v_and_b32 {v(V_T)}, 15, {v(V_L)}")
    g(f"v_lshrrev_b32 {v(V_T+1)}, 4, {v(V_L)}")
    g(f"v_lshlrev_b32 {v(V_T+2)}, 15, {v(V_T+1)}")
    g(f"v_lshl_add_u32 {v(V_T+2)}, {v(V_T)}, 1, {v(V_T+2)}")
    g(f"s_lshl_b32 {s(S_T+5)}, {s(S_W)}, 17")
    g(f"s_add_u32 {s(S_T+5)}, {s(S_T+5)}, {s(S_T+2)}")
    g(f"s_add_u32 {s(S_T+5)}, {s(S_T+5)}, {WS_Q}")
    for i in range(4):
        g(f"s_add_u32 {s(S_T+6)}, {s(S_T+5)}, {i*8192}")
        op = "buffer_store_short" if i % 2 == 0 else "buffer_store_short_d16_hi"
        g(f"{op} {v(R+4+i//2)}, {v(V_T+2)}, {s(SRD_WS,4)}, {s(S_T+6)} offen")
    for i in range(4):
        g(f"v_mov_b32 {v(R+8+i)}, -1")
    g(f"v_lshlrev_b32 {v(V_T+3)}, 4, {v(V_L)}")
    g(f"s_mul_i32 {s(S_T+5)}, {s(S_W)}, 6144")
    g(f"s_add_u32 {s(S_T+5)}, {s(S_T+5)}, {s(S_PB)}")
    g(f"s_add_u32 {s(S_T+6)}, {s(S_T+5)}, 4096")
    for i in range(6):
        so = S_T + 5 if i < 4 else S_T + 6
        g(f"buffer_store_dwordx4 {v(R+8,4)}, {v(V_T+3)}, {s(SRD_WS,4)}, {s(so)} offen offset:{(i&3)*1024}")

def k2_load_q():
    g(f"v_and_b32 {v(V_T)}, 3, {v(V_L)}")
    g(f"v_lshlrev_b32 {v(V_T)}, 13, {v(V_T)}")
    g(f"v_and_b32 {v(V_T+1)}, 15, {v(V_L)}")
    g(f"v_lshrrev_b32 {v(V_T+1)}, 2, {v(V_T+1)}")
    g(f"v_lshl_add_u32 {v(V_T)}, {v(V_T+1)}, 8, {v(V_T)}")
    g(f"v_lshrrev_b32 {v(V_T+1)}, 4, {v(V_L)}")
    g(f"v_lshl_add_u32 {v(V_T)}, {v(V_T+1)}, 4, {v(V_T)}")
    g(f"s_lshl_b32 {s(S_T+5)}, {s(S_B)}, 15")
    g(f"s_lshl_b32 {s(S_T+6)}, {s(S_HKV)}, 10")
    g(f"s_add_u32 {s(S_T+5)}, {s(S_T+5)}, {s(S_T+6)}")
    g(f"s_add_u32 {s(S_T+5)}, {s(S_T+5)}, {WS_Q}")
    for t in range(4):
        g.vmem(f"buffer_load_dwordx4 {v(V_Q+4*t,4)}, {v(V_T)}, {s(SRD_WS,4)}, {s(S_T+5)} offen offset:{t*64}", "Q")

def kernel_text(name, body, nvgpr):
    t = [f".globl {name}", ".p2align 8", f".type {name},@function", f"{name}:"] + body
    d = f""".section .rodata,"a"
.p2align 6
.amdhsa_kernel {name}
  .amdhsa_next_free_vgpr {nvgpr}
  .amdhsa_next_free_sgpr 96
  .amdhsa_accum_offset {nvgpr}
  .amdhsa_group_segment_fixed_size 0
  .amdhsa_kernarg_size 64
  .amdhsa_user_sgpr_count 2
  .amdhsa_user_sgpr_kernarg_segment_ptr 1
  .amdhsa_system_sgpr_workgroup_id_x 1
.end_amdhsa_kernel
.text"""
    return "\n".join(t) + "\n", d + "\n"

def emit(kernels):
    ref = "standalone__gqa_block_cached__sampling.s.ref"
    import os
    hdr = open(ref).read().split("; Override launch geometry")[0].rstrip("\n") if os.path.exists(ref) else ""
    text = [hdr]
    for name, body, nvgpr, lds in kernels:
        text.append(f"; @launch kernel={name} grid=({NWG},1,1) block=({NW*64},1,1) lds={lds}")
    text.append('.amdgcn_target "amdgcn-amd-amdhsa--gfx950"')
    text.append(".text")
    code, desc = "", ""
    for name, body, nvgpr, lds in kernels:
        c, d = kernel_text(name, body, nvgpr)
        code += c; desc += d
    desc = desc.replace("\n.text\n", "\n", desc.count("\n.text\n"))
    open(OUT, "w").write("\n".join(text) + "\n" + code + desc)

if __name__ == "__main__":
    prologue()
    head_issue_loads()
    head_mfma_and_stage()
    k1_publish()
    g.lab("L_END")
    end_kernel()
    body1 = [ln.replace("L_END", "L_END1") for ln in g.l]
    g.l = []; g.vm = []
    prologue()
    stamp(0)
    k2_load_q()
    issue_K(0); issue_V(0)
    if LOCK:
        g("s_barrier")
    issue_K(1); issue_V(1)
    g.wait_vm("Q")
    stamp(4)
    main_loop()
    stamp(5)
    g("s_nop 4")
    issue_WO()
    t1_combine_publish()
    t3_t4()
    stamp(7)
    if STAMP:
        stamp_flush(8)
    final_reduce()
    g.lab("L_END")
    end_kernel()
    body2 = list(g.l)
    emit([("qproj_kernel", body1, 128, 32768),
          ("standalone__gqa_block_cached__sampling_kernel", body2, NVGPR, LDS_BYTES)])
```
